```python
import torch

def _softmax(x, axis=-1):
    return torch.softmax(x, dim=axis)
def _gelu(x):
    return torch.nn.functional.gelu(x, approximate="tanh")
def _silu(x):
    return torch.nn.functional.silu(x)
def _sigmoid(x):
    return torch.sigmoid(x)
def _layernorm(x, axis=-1, eps=1e-5):
    m = x.mean(dim=axis, keepdim=True)
    v = x.var(dim=axis, keepdim=True, unbiased=False)
    return (x - m) / torch.sqrt(v + eps)
def _scatter_add(tgt, idx, src, axis=0):
    return tgt.clone().index_add_(axis, idx, src)
def _segment_sum(src, seg, n):
    out = torch.zeros((n,) + src.shape[1:], dtype=src.dtype)
    return out.index_add_(0, seg, src)
def _pad(x, pw):
    flat = tuple(v for pair in reversed(pw) for v in pair)
    return torch.nn.functional.pad(x, flat)

kernel_name = 'gated_mix__linear_kernel_hedgehog__ssm_conv_s4__prompt'

def setup_inputs():

    _w = (lambda a: (lambda t: t.to(torch.bfloat16) if t.is_floating_point() else t)(torch.as_tensor(a)))
    def _A_setup():
        B, S, D, H = 1, 2048, 512, 32
        Dh = D // H
        return {
            "x": _w((lambda *s: torch.randn(*s, dtype=torch.bfloat16) * 0.05)(B, S, D)),
            "wqkv": _w((lambda *s: torch.randn(*s, dtype=torch.bfloat16) * 0.8)(D, 3 * D)),
            "w_phi": _w((lambda *s: torch.randn(*s, dtype=torch.bfloat16) * 0.8)(H, Dh, Dh) * (Dh ** -0.5)),
            "wo": _w((lambda *s: torch.randn(*s, dtype=torch.bfloat16) * 0.05)(D, D)),
        }
    _A_in = _A_setup()

    def _B_setup():
        B, L, D, N = 1, 2048, 512, 128
        A_re = -(lambda _x: torch.exp(torch.as_tensor(_x)))((lambda *s: torch.randn(*s, dtype=torch.bfloat16) * 3.2)(D, N))
        A_im = torch.pi * (lambda *s: torch.randn(*s, dtype=torch.bfloat16) * 0.05)(D, N)
        B_re = (lambda *s: torch.randn(*s, dtype=torch.bfloat16) * 0.2)(D, N)
        B_im = (lambda *s: torch.randn(*s, dtype=torch.bfloat16) * 0.2)(D, N)
        C_re = (lambda *s: torch.randn(*s, dtype=torch.bfloat16) * 0.2)(D, N)
        C_im = (lambda *s: torch.randn(*s, dtype=torch.bfloat16) * 0.2)(D, N)
        log_dt = (lambda *s: torch.randn(*s, dtype=torch.bfloat16) * 0.05)(D) * 0.5 - 4.0
        Dskip = (lambda *s: torch.randn(*s, dtype=torch.bfloat16) * 0.05)(D)
        return {
            "u": _w((lambda *s: torch.randn(*s, dtype=torch.bfloat16) * 0.05)(B, L, D)),
            "A_re": _w(A_re),
            "A_im": _w(A_im),
            "B_re": _w(B_re),
            "B_im": _w(B_im),
            "C_re": _w(C_re),
            "C_im": _w(C_im),
            "log_dt": _w(log_dt),
            "Dskip": _w(Dskip),
        }
    _B_in = _B_setup()

    return {
        "A_x": _A_in["x"],
        "A_wqkv": _A_in["wqkv"],
        "A_w_phi": _A_in["w_phi"],
        "A_wo": _A_in["wo"],
        "B_u": _B_in["u"],
        "B_A_re": _B_in["A_re"],
        "B_A_im": _B_in["A_im"],
        "B_B_re": _B_in["B_re"],
        "B_B_im": _B_in["B_im"],
        "B_C_re": _B_in["C_re"],
        "B_C_im": _B_in["C_im"],
        "B_log_dt": _B_in["log_dt"],
        "B_Dskip": _B_in["Dskip"],
        "gate_w": _w((lambda *s: torch.randn(*s, dtype=torch.bfloat16) * 0.05)(512) * 16.0),
    }

def reference(A_x, A_wqkv, A_w_phi, A_wo, B_u, B_A_re, B_A_im, B_B_re, B_B_im, B_C_re, B_C_im, B_log_dt, B_Dskip, gate_w):
    def _A_ref(x, wqkv, w_phi, wo):
        B, S, D = x.shape
        H = 32; Dh = D // H
        qkv = (lambda x, *d: x.permute(*d))((x @ wqkv).reshape(B, S, 3, H, Dh), 2, 0, 3, 1, 4)
        q, k, v = qkv[0], qkv[1], qkv[2]
        pq = torch.einsum("bhsd,hdf->bhsf", q, w_phi)
        pk = torch.einsum("bhsd,hdf->bhsf", k, w_phi)
        phi_q = torch.concatenate([_softmax(pq, axis=-1), _softmax(-pq, axis=-1)], axis=-1)
        phi_k = torch.concatenate([_softmax(pk, axis=-1), _softmax(-pk, axis=-1)], axis=-1)
        kv = torch.einsum("bhsf,bhsd->bhfd", phi_k, v)
        z  = torch.einsum("bhsf->bhf", phi_k)
        num = torch.einsum("bhqf,bhfd->bhqd", phi_q, kv)
        den = torch.einsum("bhqf,bhf->bhq", phi_q, z)[..., None] + 1e-6
        o = num / den
        return (lambda x, *d: x.permute(*d))(o, 0, 2, 1, 3).reshape(B, S, D) @ wo

    def _B_ref(u, A_re, A_im, B_re, B_im, C_re, C_im, log_dt, Dskip):
        Bsz, L, D = u.shape
        dt = torch.exp(log_dt)[:, None]
        A = A_re + 1j * A_im
        Bc = B_re + 1j * B_im
        Cc = C_re + 1j * C_im
        logdA = dt * A
        dB = dt * Bc
        l = (lambda x, dt: x.to(dt))(torch.arange(L), A_re.dtype)
        P = torch.exp(logdA[:, :, None] * l[None, None, :])
        K = torch.einsum("dn,dnl,dn->dl", Cc, P, dB).real
        L2 = 2 * L
        Kp = _pad(K, ((0, 0), (0, L)))
        up = (lambda x, *d: x.permute(*d))(u, 0, 2, 1)
        up = _pad(up, ((0, 0), (0, 0), (0, L)))
        Kf = (lambda x, axes=(-2,-1): torch.fft.rfft2(x.float(), dim=axes))(Kp[:, None, :], axes=(-2, -1))
        Uf = (lambda x, axes=(-2,-1): torch.fft.rfft2(x.float(), dim=axes))(up[:, :, None, :], axes=(-2, -1))
        Yf = Uf * Kf[None, :, :, :]
        y = (lambda x, s, axes=(-2,-1): torch.fft.irfft2(x, s=s, dim=axes).to(torch.bfloat16))(Yf, (1, L2), axes=(-2, -1))[:, :, 0, :L]
        y = (lambda x, *d: x.permute(*d))(y, 0, 2, 1) + u * Dskip[None, None, :]
        return y

    x = A_x
    g = _sigmoid((x * gate_w).sum(-1, keepdims=True))
    a = _A_ref(x, A_wqkv, A_w_phi, A_wo)
    b = _B_ref(x, B_A_re, B_A_im, B_B_re, B_B_im, B_C_re, B_C_im, B_log_dt, B_Dskip)
    return g * a + (1 - g) * b
```

```python
import re

TRANS = ('v_exp_f32', 'v_log_f32', 'v_rcp_f32', 'v_rsq_f32', 'v_sqrt_f32', 'v_sin_f32', 'v_cos_f32')
_REG = re.compile(r'^(-|\|)?(?:abs\()?([vsa])(?:(\d+)|\[(\d+):(\d+)\])\)?\|?$')

def regs_of(tok):
    tok = tok.strip()
    if tok in ('vcc', 'exec', 'm0', 'scc'):
        return {tok}
    if tok in ('vcc_lo', 'vcc_hi'): return {'vcc'}
    if tok in ('exec_lo', 'exec_hi'): return {'exec'}
    m = _REG.match(tok)
    if not m: return set()
    k = m.group(2)
    if m.group(3) is not None:
        return {k + m.group(3)}
    return {f'{k}{i}' for i in range(int(m.group(4)), int(m.group(5)) + 1)}

class Ins:
    def __init__(self, text):
        self.text = text
        t = text.split(';')[0].strip()
        self.label = t.endswith(':')
        self.op = t.split()[0] if t else ''
        rest = t[len(self.op):].strip()
        ops, depth, cur = [], 0, ''
        for ch in rest:
            if ch in '[(': depth += 1
            if ch in '])': depth -= 1
            if ch == ',' and depth == 0:
                ops.append(cur.strip()); cur = ''
            else: cur += ch
        if cur.strip(): ops.append(cur.strip())
        self.mods = ''
        if ops:
            parts = ops[-1].split(None, 1)
            ops[-1] = parts[0]
            self.mods = parts[1] if len(parts) > 1 else ''
        self.ops = ops
        op = self.op
        self.mfma = op.startswith('v_mfma')
        self.valu = op.startswith('v_') and not self.mfma
        self.trans = any(op.startswith(x) for x in TRANS)
        self.ds = op.startswith('ds_')
        self.vmem = op.startswith('buffer_') or op.startswith('global_')
        self.salu = op.startswith('s_')
        self.dpp = self.valu and any(x in self.mods for x in ('row_', 'quad_perm', 'wave_'))
        self.perml = op.startswith('v_permlane')
        self.rdlane = op.startswith('v_readfirstlane') or op.startswith('v_readlane')
        self.ldsdma = self.vmem and re.search(r'\blds\b', self.mods) is not None
        R = [regs_of(o) for o in ops]
        w, r = set(), set()
        allr = set().union(*R) if R else set()
        self.passes = 0
        if self.label or not op:
            pass
        elif self.mfma:
            self.passes = 8 if '32x32x16' in op else 4 if '16x16x32' in op else None
            assert self.passes, op
            w = R[0]; self.A, self.B, self.C = R[1], R[2], R[3]; r = R[1] | R[2] | R[3]
        elif self.perml:
            w = R[0] | R[1]; r = set(w)
        elif self.valu:
            w = set(R[0]); r = set().union(*R[1:]) if len(R) > 1 else set()
            if op.startswith(('v_fmac', 'v_dot2c', 'v_pk_fmac')): r |= R[0]
            if op.startswith('v_cndmask') and len(ops) == 3: r |= {'vcc'}
            if self.dpp: r |= R[0]
        elif self.ds:
            if op.startswith('ds_read'): w = R[0]; r = set().union(*R[1:])
            else: r = allr
        elif self.vmem:
            if 'load' in op and not self.ldsdma:
                w = R[0]; r = set().union(*R[1:])
            elif 'atomic' in op and 'sc0' in self.mods:
                w = R[0]; r = allr
            else: r = allr
            if self.ldsdma: r |= {'m0'}
        elif self.salu:
            if op.startswith(('s_cmp', 's_waitcnt', 's_nop', 's_barrier', 's_branch', 's_cbranch', 's_endpgm', 's_sleep', 's_setprio', 's_bitcmp')):
                r = allr
            else:
                w = set(R[0]) if R else set(); r = set().union(*R[1:]) if len(R) > 1 else set()
                if 'saveexec' in op: w |= {'exec'}
        self.w, self.r = w, r
        self.widestore = self.vmem and 'store' in op and ('x3' in op or 'x4' in op)
        self.storedata = R[0] if self.widestore else set()
    def states(self):
        if self.label or not self.op: return 0
        if self.op == 's_nop': return int(self.ops[0], 0) + 1
        return 1

def isv(s): return {x for x in s if x[0] in 'va' and x not in ('vcc',)}
def iss(s): return {x for x in s if (x[0] == 's' and x != 'scc') or x == 'vcc'}

def need(p, c):
    n = 0
    if p.valu:
        pv = isv(p.w); ps = iss(p.w)
        if c.mfma and pv & c.r: n = max(n, 2)
        if p.trans and c.valu and not c.trans and pv & c.r: n = max(n, 1)
        if p.trans and c.mfma and pv & c.r: n = max(n, 2)
        if (c.perml or c.dpp) and pv & c.r: n = max(n, 2)
        if c.rdlane and pv & c.r: n = max(n, 1)
        if ps:
            if c.valu and ps & c.r: n = max(n, 4 if c.rdlane else 2)
            if c.vmem and ps & c.r: n = max(n, 5)
            if c.salu and ps & c.r: n = max(n, 2)
        if 'exec' in p.w: n = max(n, 5)
        if p.op.startswith('v_dot') and c.op != p.op and pv & (c.r | c.w): n = max(n, 3)
        if p.op.startswith('v_dot') and c.op == p.op and pv & (regs_of(c.ops[1]) | regs_of(c.ops[2])): n = max(n, 3)
    if p.mfma:
        big = {4: 8, 8: 12}[p.passes]; part = {4: 6, 8: 10}[p.passes]; war = {4: 3, 8: 7}[p.passes]
        if c.mfma:
            if p.w & (c.A | c.B): n = max(n, big)
            if p.w & c.C:
                if not (c.C == p.w and c.passes == p.passes): n = max(n, part)
            elif p.w & c.w: n = max(n, part)
        elif c.valu or c.ds or c.vmem:
            if p.w & (c.r | c.w): n = max(n, big)
            if c.valu and p.C & c.w: n = max(n, war)
            if (c.ds or c.vmem) and p.C & c.w: n = max(n, war)
    if p.salu and 'm0' in p.w and c.ldsdma: n = max(n, 1)
    if p.widestore and p.storedata & c.w: n = max(n, 2)
    return n

class Asm:
    def __init__(self):
        self.ins = []
    def __call__(self, text):
        for line in text.split('\n'):
            line = line.strip()
            if line: self.ins.append(Ins(line))
    def extend(self, other): self.ins += other.ins
    def finish(self):
        out = []
        srcs = {}
        def required(c):
            pad = 0
            stack = [(len(out) - 1, 0)]; seen = set()
            while stack:
                i, dist = stack.pop()
                while i >= 0 and dist < 20:
                    if (i, dist) in seen: break
                    seen.add((i, dist))
                    p = out[i]
                    if p.label:
                        for b in srcs.get(p.text.strip()[:-1], ()): stack.append((b, dist))
                        if i > 0 and out[i-1].op in ('s_branch', 's_endpgm'): break
                    elif p.op and not p.op.startswith('.'):
                        k = need(p, c)
                        if k > dist: pad = max(pad, k - dist)
                    dist += p.states(); i -= 1
            return pad
        for c in self.ins:
            if c.label or not c.op or c.op.startswith('.'):
                out.append(c); continue
            pad = required(c)
            while pad > 0:
                k = min(pad, 16); out.append(Ins(f's_nop {k-1}')); pad -= k
            if c.op.startswith(('s_branch', 's_cbranch')): srcs.setdefault(c.ops[0], []).append(len(out))
            out.append(c)
        return '\n'.join((i.text if (i.label or i.op.startswith('.')) else '  ' + i.text) for i in out) + '\n'

class Regs:
    def __init__(self, kind, start, limit):
        self.kind, self.next, self.limit, self.hi = kind, start, limit, start
    def alloc(self, n=1, align=None):
        a = align or (1 if n == 1 else 2 if n < 4 or self.kind == 'v' else 4)
        self.next = (self.next + a - 1) // a * a
        b = self.next; self.next += n; self.hi = max(self.hi, self.next)
        assert self.next <= self.limit, f'out of {self.kind} regs'
        return b
    def mark(self): return self.next
    def release(self, m): self.next = m

def v(b, n=1): return f'v{b}' if n == 1 else f'v[{b}:{b+n-1}]'
def s(b, n=1): return f's{b}' if n == 1 else f's[{b}:{b+n-1}]'

def kdesc(name, vg, sg):
    vg4 = (vg + 3) // 4 * 4
    return f'''.p2align 6
.amdhsa_kernel {name}
  .amdhsa_next_free_vgpr {vg}
  .amdhsa_next_free_sgpr {sg}
  .amdhsa_accum_offset {vg4}
  .amdhsa_group_segment_fixed_size 0
  .amdhsa_kernarg_size 136
  .amdhsa_user_sgpr_count 2
  .amdhsa_user_sgpr_kernarg_segment_ptr 1
  .amdhsa_system_sgpr_workgroup_id_x 1
.end_amdhsa_kernel
'''
```

```python
from asmlib import *

NAME = 'gated_mix__linear_kernel_hedgehog__ssm_conv_s4__prompt'
WS_PHIQ = 0;            SZ_PHIQ = 4 << 20
WS_B4   = 4 << 20;      SZ_B4   = 2 << 20
WS_KV   = 6 << 20;      SZ_KV   = 32 * 17 * 128
WS_G    = (6 << 20) + (128 << 10); SZ_G = 8192
WS_FLG  = WS_KV + SZ_KV; SZ_FLG = 8192
F_KV = SZ_KV; F_B = SZ_KV + 4096
S_LATE = 92
NZERO = 8
SPIN_MAX = 1 << 16
L_O = 65536; L_WOB = 0; L_WOA = 98304
LOG2E = 0x3fb8aa3b
PTR = 36
P_X, P_W, P_PHI, P_WO, P_U, P_ARE, P_AIM, P_BRE, P_BIM, P_CRE, P_CIM, P_LDT, P_DSK, P_GW, P_OUT, P_DBG, P_WS = range(17)

def load_ptrs(a):
    a(f's_load_dwordx16 s[36:51], s[0:1], 0')
    a(f's_load_dwordx16 s[52:67], s[0:1], 64')
    a(f's_load_dwordx2 s[68:69], s[0:1], 128')

def srd(a, dst, p, size, off=0):
    lo = PTR + 2 * p
    if off:
        a(f's_add_u32 s{dst}, s{lo}, {off:#x}')
        a(f's_addc_u32 s{dst+1}, s{lo+1}, 0')
    else:
        a(f's_mov_b32 s{dst}, s{lo}')
        a(f's_mov_b32 s{dst+1}, s{lo+1}')
    a(f's_mov_b32 s{dst+2}, {size:#x}')
    a(f's_mov_b32 s{dst+3}, 0x20000')

class Cnt:
    def __init__(self, a, name, maxv):
        self.a, self.name, self.maxv, self.q = a, name, maxv, []
    def issue(self, tag): self.q.append(tag)
    def n_after(self, tag):
        idx = max(i for i, t in enumerate(self.q) if t == tag)
        return len(self.q) - 1 - idx
    def wait(self, tag):
        if tag not in self.q: return
        n = self.n_after(tag)
        n = min(n, self.maxv)
        self.a(f's_waitcnt {self.name}({n})')
        self.q = self.q[len(self.q) - n:]
    def wait_all(self):
        self.a(f's_waitcnt {self.name}(0)'); self.q = []

def interleave(*streams):
    out = Asm(); idx = [0] * len(streams)
    while any(idx[i] < len(st.ins) for i, st in enumerate(streams)):
        for i, st in enumerate(streams):
            if idx[i] < len(st.ins):
                out.ins.append(st.ins[idx[i]]); idx[i] += 1
    return out

import os
TRACE = int(os.environ.get('TRACE', '0'))
WS_TR = 8 << 20
VTR = 255
def stamp(a, k):
    if not TRACE: return
    if TRACE == 2:
        a('s_memrealtime s[98:99]')
        a('s_waitcnt lgkmcnt(0)')
        a(f'v_writelane_b32 v{VTR}, s98, {k}')
        return
    a('s_memtime s[98:99]')
    if k in (0, 15): a('s_memrealtime s[96:97]')
    a('s_waitcnt lgkmcnt(0)')
    a(f'v_writelane_b32 v{VTR}, s98, {k}')
    if k in (0, 15): a(f'v_writelane_b32 v{VTR}, s96, {16 + k}')
def trace_out(a, kidx, sW):
    if not TRACE: return
    a('s_mov_b64 exec, -1')
    a('s_waitcnt vmcnt(0)')
    stamp(a, 15)
    if TRACE == 2:
        srd(a, 4, P_DBG, 256)
        a(f'v_readlane_b32 s3, v{VTR}, 0')
        a(f's_sub_u32 s3, 0, s3')
        a(f'v_writelane_b32 v{VTR}, s3, 14')
        a(f'v_mov_b32 v254, 0x1000')
        def mp(d):
            for lane, word in d.items():
                a(f's_mov_b32 s3, {4*word}')
                a(f'v_writelane_b32 v254, s3, {lane}')
        mp({14: 1, 10: 10, 12: 11, 13: 12, 15: 13, 0: 14})
        a(f's_cmp_ge_u32 s2, 128')
        a(f's_cbranch_scc1 T_c')
        mp({1: 2, 3: 3, 6: 4, 8: 5, 4: 15})
        a(f's_branch T_d')
        a('T_c:')
        mp({1: 6, 3: 7, 6: 8, 8: 9})
        a('T_d:')
        a(f'buffer_atomic_umax v{VTR}, v254, s[4:7], 0 offen')
        return
    a('s_getreg_b32 s96, hwreg(HW_REG_XCC_ID)')
    a('s_getreg_b32 s97, hwreg(HW_REG_HW_ID)')
    a(f'v_writelane_b32 v{VTR}, s96, 40')
    a(f'v_writelane_b32 v{VTR}, s97, 41')
    srd(a, 4, P_WS, 1 << 21, WS_TR + kidx * (1 << 19))
    a(f's_lshl_b32 s3, s2, 3')
    a(f's_add_u32 s3, s3, s{sW}')
    a(f's_lshl_b32 s3, s3, 8')
    a(f'v_and_b32 v254, 63, v0')
    a(f'v_lshlrev_b32 v254, 2, v254')
    a(f'buffer_store_dword v{VTR}, v254, s[4:7], s3 offen')


def zf_issue(a, sd, vt):
    srd(a, sd, P_DBG, 256)
    a(f'buffer_load_dword v{vt}, off, {s(sd,4)}, 0 sc1')
def zf_check(a, sd, vt, st, lbl):
    a(f's_mov_b32 s{st+1}, 0')
    a(f'{lbl}_a:')
    a(f'v_readfirstlane_b32 s{st}, v{vt}')
    a(f's_cmp_ge_u32 s{st}, {NZERO}')
    a(f's_cbranch_scc1 {lbl}_b')
    a(f'buffer_load_dword v{vt}, off, {s(sd,4)}, 0 sc1')
    a(f's_add_u32 s{st+1}, s{st+1}, 1')
    a(f's_cmp_ge_u32 s{st+1}, {SPIN_MAX}')
    a(f's_cbranch_scc1 K_end')
    a('s_waitcnt vmcnt(0)')
    a(f's_branch {lbl}_a')
    a(f'{lbl}_b:')
def set_flag(a, skv, soff, vt):
    a(f'v_mov_b32 v{vt}, 1')
    a(f's_mov_b64 exec, 1')
    a(f'buffer_store_dword v{vt}, off, {s(skv,4)}, s{soff} sc1')
    a(f's_mov_b64 exec, -1')

def wo_dma_setup(a, sW, sCB, st):
    a(f's_lshl_b32 s{st}, s{sW}, 15')
    a(f's_lshl_b32 s{st+1}, s{sCB}, 8')
    a(f's_add_u32 s{st}, s{st}, s{st+1}')
    a(f's_lshl_b32 s{st+1}, s{sW}, 13')
def wo_dma_one(a, part, t, swo, vwo, st):
    a(f's_add_u32 s{st+2}, s{st}, {part*262144 + t*4096}')
    a(f's_add_u32 m0, s{st+1}, {(L_WOB if part else L_WOA) + t*1024}')
    a(f'buffer_load_dwordx4 v{vwo}, {s(swo,4)}, s{st+2} offen lds')
def wo_dma(a, part, swo, vwo, sW, sCB, st):
    wo_dma_setup(a, sW, sCB, st)
    for t in range(8): wo_dma_one(a, part, t, swo, vwo, st)
def wo_lane(a, vwo, vL, t):
    a(f'v_lshrrev_b32 v{t}, 4, v{vL}')
    a(f'v_lshlrev_b32 v{vwo}, 2, v{t}')
    a(f'v_xor_b32 v{vwo}, v{vwo}, v{vL}')
    a(f'v_and_b32 v{vwo}, 15, v{vwo}')
    a(f'v_lshlrev_b32 v{vwo}, 4, v{vwo}')
    a(f'v_lshl_add_u32 v{vwo}, v{t}, 10, v{vwo}')
S_RT, S_CB = 94, 95

def nstamp(a, sreg):
    if TRACE == 1: a(f's_memtime {s(sreg,2)}')
def nflush(a, pairs):
    if TRACE != 1: return
    a('s_waitcnt lgkmcnt(0)')
    for sreg, k in pairs: a(f'v_writelane_b32 v{VTR}, s{sreg}, {k}')
EXP = os.environ.get('EXP', '').split(',')

def weave(a, main, fill):
    n = len(main); k = 0
    for i, m in enumerate(main):
        m() if callable(m) else a(m)
        tgt = (len(fill) * (i + 1) + n - 1) // n
        while k < tgt:
            fill[k]() if callable(fill[k]) else a(fill[k]); k += 1

V_G0, V_G1 = 250, 251
S_GN = 93
def gate_loads(a, sx, sgw, vA1, dst, nrows, soff):
    for r in range(nrows):
        if r == 4: a(f's_add_u32 s{soff}, s{soff}, 4096')
        a(f'buffer_load_dwordx4 {v(dst+4*r,4)}, v{vA1}, {s(sx,4)}, s{soff} offen offset:{(r&3)*1024}')
    a(f'buffer_load_dwordx4 {v(dst+4*nrows,4)}, v{vA1}, {s(sgw,4)}, 0 offen')
def gate_math(GX, GW, X, out):
    a = Asm()
    for r in range(4):
        for i in range(4):
            a(f'v_dot2_f32_bf16 v{X+r}, v{GX+4*r+i}, v{GW+i}, {"0" if i==0 else v(X+r)}')
    a(f'v_permlane32_swap_b32 v{X}, v{X+1}')
    a(f'v_permlane32_swap_b32 v{X+2}, v{X+3}')
    a(f'v_add_f32 v{X}, v{X}, v{X+1}')
    a(f'v_add_f32 v{X+2}, v{X+2}, v{X+3}')
    a(f'v_permlane16_swap_b32 v{X}, v{X+2}')
    a(f'v_add_f32 v{X}, v{X}, v{X+2}')
    for sh in (8, 4, 2, 1):
        a(f'v_add_f32_dpp v{X}, v{X}, v{X} row_ror:{sh} row_mask:0xf bank_mask:0xf')
    a(f'v_cvt_pk_bf16_f32 v{X}, v{X}, v{X}')
    a(f'v_and_b32 v{X}, 0xffff0000, v{X}')
    a(f'v_mul_f32 v{X}, 0xbfb8aa3b, v{X}')
    a(f'v_exp_f32 v{X}, v{X}')
    a(f'v_add_f32 v{X}, 1.0, v{X}')
    a(f'v_rcp_f32 v{X}, v{X}')
    a(f'v_cvt_pk_bf16_f32 v{X}, v{X}, v{X}')
    a(f'v_and_b32 v{out}, 0xffff0000, v{X}')
    return a
LOOK = int(os.environ.get('LOOK', '2'))
HPRIO = int(os.environ.get('HPRIO', '0'))
CPRIO = int(os.environ.get('CPRIO', '0'))
PREF = int(os.environ.get('PREF', '1'))

def wo4_setup(a, sW4, sCB, st):
    wo_dma_setup(a, sW4, sCB, st)
def wo4_one(a, piece, t, swo, vwo, st):
    lds = (L_WOA, L_WOA + 32768, L_WOB, L_WOB + 32768)[piece]
    a(f's_add_u32 s{st+2}, s{st}, {piece*131072 + t*4096}')
    a(f's_add_u32 m0, s{st+1}, {lds + t*1024}')
    a(f'buffer_load_dwordx4 v{vwo}, {s(swo,4)}, s{st+2} offen lds')

def wo8_setup(a, sW, st):
    a(f's_lshl_b32 s{st}, s{sW}, 14')
    a(f's_lshl_b32 s{st+1}, s{S_CB}, 8')
    a(f's_add_u32 s{st}, s{st}, s{st+1}')
    a(f's_lshl_b32 s{st+1}, s{sW}, 12')
def wo8(piece, t, swo, vwo, st):
    lds = (L_WOA, L_WOA + 32768, L_WOB, L_WOB + 32768)[piece]
    return (f's_add_u32 s{st+2}, s{st}, {piece*131072 + t*4096}\ns_add_u32 m0, s{st+1}, {lds + t*1024}\n'
            f'buffer_load_dwordx4 v{vwo}, {s(swo,4)}, s{st+2} offen lds')

def prefetch(a, sId, st0, sE, SX, SW_, vL, t0, t1, vD, st, pre):
    a(f's_mul_i32 s{st}, s{sId}, 205')
    a(f's_lshr_b32 s{st}, s{st}, 12')
    a(f's_mul_i32 s{st+1}, s{st}, 20')
    a(f's_sub_u32 s{st+1}, s{sId}, s{st+1}')
    a(f's_add_u32 s{st}, s{st}, {st0}')
    a(f's_cmp_ge_u32 s{st+1}, 8')
    a(f's_cbranch_scc1 {pre}_pfw')
    a(f's_lshr_b32 s{st+2}, s{sE}, 1')
    a(f's_lshl_b32 s{st+2}, s{st+2}, 19')
    a(f's_lshl_b32 s{st+1}, s{st+1}, 16')
    a(f's_add_u32 s{st+2}, s{st+2}, s{st+1}')
    a(f's_lshl_b32 s{st}, s{st}, 7')
    a(f's_add_u32 s{st+2}, s{st+2}, s{st}')
    a(f'v_lshlrev_b32 v{t0}, 10, v{vL}')
    a(f'buffer_load_dword v{vD}, v{t0}, {s(SX,4)}, s{st+2} offen')
    a(f's_branch {pre}_pfd')
    a(f'{pre}_pfw:')
    a(f's_mul_i32 s{st}, s{st}, 192')
    a(f's_sub_u32 s{st+1}, s{st+1}, 8')
    a(f's_lshl_b32 s{st+1}, s{st+1}, 4')
    a(f's_add_u32 s{st}, s{st}, s{st+1}')
    a(f's_lshl_b32 s{st}, s{st}, 10')
    a(f's_and_b32 s{st+1}, s{sE}, 1')
    a(f's_lshl_b32 s{st+1}, s{st+1}, 9')
    a(f's_add_u32 s{st}, s{st}, s{st+1}')
    a(f'v_lshrrev_b32 v{t0}, 2, v{vL}')
    a(f'v_lshlrev_b32 v{t0}, 10, v{t0}')
    a(f'v_and_b32 v{t1}, 3, v{vL}')
    a(f'v_lshl_add_u32 v{t0}, v{t1}, 7, v{t0}')
    a(f'buffer_load_dword v{vD}, v{t0}, {s(SW_,4)}, s{st} offen')
    a(f'{pre}_pfd:')
```

```python
from common import *

UB = 0; CPS = 4272; CHS = 17120
RAW = 68480; RAWQ = 544
TAB = 90112; TROW = 16; TREG = 4352; TABW = 2 * TREG
KROFF = 3072
YB = RAW; YS = 4160

def cmul(a, d, x, y):
    a(f'v_pk_mul_f32 {v(d,2)}, {v(x,2)}, {v(y,2)} op_sel:[0,0] op_sel_hi:[0,1]')
    a(f'v_pk_fma_f32 {v(d,2)}, {v(x,2)}, {v(y,2)}, {v(d,2)} op_sel:[1,1,0] op_sel_hi:[1,0,1] neg_lo:[0,1,0]')

def merge(a, sa, sb, ra, rb):
    ia = ib = 0
    while ia < len(sa.ins) or ib < len(sb.ins):
        for _ in range(ra):
            if ia < len(sa.ins): a.ins.append(sa.ins[ia]); ia += 1
        for _ in range(rb):
            if ib < len(sb.ins): a.ins.append(sb.ins[ib]); ib += 1

def gen_C(a, sE, sJ):
    R = Regs('v', 1, 250)
    SX, SB4 = 4, 8
    SP = [12, 16, 20, 24, 28, 32]
    SDB, SKV, SWO, SGW = 12, 16, 20, 24
    sW, sCG, sCH, sHW, sTMP, sLD, sDS, sTB = 72, 73, 74, 75, 76, 80, 82, 84
    vm = Cnt(a, 'vmcnt', 63); lg = Cnt(a, 'lgkmcnt', 15)
    vL = R.alloc(); t0 = R.alloc(); t1 = R.alloc(); t2 = R.alloc(); t3 = R.alloc(); vTA = R.alloc()
    vRW = R.alloc(); vUS = R.alloc(); vUD = R.alloc(); vZ = R.alloc(); vWO = R.alloc()
    XR = R.alloc(16)
    UT = R.alloc(8)
    a(f'v_lshrrev_b32 v{t0}, 6, v0')
    a(f'v_and_b32 v{vL}, 63, v0')
    a(f'v_readfirstlane_b32 s{sW}, v{t0}')
    a(f's_lshl_b32 s{sCG}, s{sE}, 4')
    a(f's_add_u32 s{sCG}, s{sCG}, s{sJ}')
    a(f'v_lshlrev_b32 v{t0}, 1, v0')
    a(f's_lshl_b32 s{sTMP}, s{sCG}, 3')
    a(f's_lshl_b32 s{sTMP+1}, s{sCG}, 10')
    a('s_waitcnt lgkmcnt(0)')
    a(f's_load_dwordx2 {s(sLD,2)}, {s(PTR+2*P_LDT,2)}, s{sTMP}')
    a(f's_load_dwordx2 {s(sDS,2)}, {s(PTR+2*P_DSK,2)}, s{sTMP}')
    m = R.mark()
    PRM = R.alloc(6)
    for i, p in enumerate((P_ARE, P_AIM, P_BRE, P_BIM, P_CRE, P_CIM)):
        srd(a, SP[i], p, 0x20000)
        a(f'buffer_load_ushort v{PRM+i}, v{t0}, {s(SP[i],4)}, s{sTMP+1} offen'); vm.issue('prm')
    srd(a, SX, P_X, 0x200000)
    a(f's_lshr_b32 s{sCH}, s{sW}, 1')
    a(f's_and_b32 s{sHW}, s{sW}, 1')
    vX1 = R.alloc(); vX2 = R.alloc()
    a(f'v_lshlrev_b32 v{vX1}, 10, v0')
    a(f'v_add_u32 v{vX1}, s{sTMP}, v{vX1}')
    a(f'v_add_u32 v{vX2}, {-3*1024}, v{vX1}')
    def xload(i):
        b = Asm()
        if i: b(f'v_add_u32 v{vX1}, {512*1024}, v{vX1}'); b(f'v_add_u32 v{vX2}, {512*1024}, v{vX2}')
        b(f'buffer_load_dwordx2 {v(XR+4*i,2)}, v{vX1}, {s(SX,4)}, 0 offen'); vm.issue(('x', i))
        b(f's_mov_b64 exec, 7')
        b(f'buffer_load_dwordx2 {v(XR+4*i+2,2)}, v{vX2}, {s(SX,4)}, 0 offen'); vm.issue(('x', i))
        b(f's_mov_b64 exec, -1')
        a.extend(b)
    def pref_c():
        srd(a, SP[0], P_W, 0x180000)
        a(f's_lshl_b32 s{sTMP+2}, s{sJ}, 3')
        a(f's_add_u32 s{sTMP+2}, s{sTMP+2}, s{sW}')
        a(f's_cmp_lt_u32 s{sTMP+2}, 32')
        a(f's_cbranch_scc1 C_pf3')
        a(f's_sub_u32 s{sTMP+2}, s{sTMP+2}, 32')
        prefetch(a, sTMP + 2, 5, sE, SX, SP[0], vL, t3, vZ, vZ, 86, 'C')
        a(f's_branch C_pfe')
        a(f'C_pf3:')
        a(f's_lshl_b32 s{sTMP+2}, s{sTMP+2}, 16')
        a(f's_lshl_b32 s{sTMP+3}, s{sE}, 7')
        a(f's_add_u32 s{sTMP+2}, s{sTMP+2}, s{sTMP+3}')
        a(f'v_lshlrev_b32 v{t3}, 10, v{vL}')
        a(f'buffer_load_dword v{vZ}, v{t3}, {s(SX,4)}, s{sTMP+2} offen')
        a(f'C_pfe:')
        vm.issue('pf')
    srd(a, SB4, P_WS, SZ_B4, WS_B4)
    a(f's_mul_i32 s{sTB}, s{sW}, {TABW}')
    a(f's_add_u32 s{sTB}, s{sTB}, {TAB}')
    a(f'v_lshrrev_b32 v{t0}, 3, v{vL}')
    a(f's_movk_i32 s{sTMP}, 528')
    a(f'v_mul_u32_u24 v{vTA}, s{sTMP}, v{t0}')
    a(f'v_bfe_u32 v{t0}, v{vL}, 2, 1')
    a(f'v_lshl_add_u32 v{vTA}, v{t0}, 8, v{vTA}')
    a(f'v_and_b32 v{t0}, 3, v{vL}')
    a(f'v_lshl_add_u32 v{vTA}, v{t0}, 2, v{vTA}')
    a(f'v_add_u32 v{vTA}, s{sTB}, v{vTA}')
    a(f's_mul_i32 s{sTMP}, s{sW}, {4*RAWQ}')
    a(f's_add_u32 s{sTMP}, s{sTMP}, {RAW}')
    a(f'v_lshl_add_u32 v{vRW}, v{vL}, 3, s{sTMP}')
    a(f'v_and_b32 v{t2}, 3, v{vL}')
    a(f'v_lshrrev_b32 v{t1}, 4, v{vL}')
    a(f'v_lshl_add_u32 v{t3}, v{t1}, 2, v{t2}')
    a(f'v_bfe_u32 v{t0}, v{vL}, 2, 2')
    a(f'v_lshl_add_u32 v{t3}, v{t3}, 2, v{t0}')
    a(f'v_lshl_add_u32 v{vUS}, v{t3}, 3, s{sTMP}')
    a(f's_movk_i32 s{sTMP}, {CHS}')
    a(f'v_mul_u32_u24 v{vUD}, s{sTMP}, v{t2}')
    a(f'v_lshrrev_b32 v{t0}, 2, v{vL}')
    a(f'v_lshl_add_u32 v{vUD}, v{t0}, 3, v{vUD}')
    a(f's_lshl_b32 s{sTMP}, s{sW}, 7')
    a(f's_add_u32 s{sTMP}, s{sTMP}, {UB + 56}')
    a(f'v_add_u32 v{vUD}, s{sTMP}, v{vUD}')
    def ubuild(i, b, vmc, lgc):
        n = vm.n_after(('x', i)); vm.q = vm.q[len(vm.q) - n:]
        b(f's_waitcnt vmcnt({n})')
        b(f'ds_write_b64 v{vRW}, {v(XR+4*i,2)} offset:{i*RAWQ + 24}'); lgc.issue('uw')
        b(f's_mov_b64 exec, 7')
        b(f'ds_write_b64 v{vRW}, {v(XR+4*i+2,2)} offset:{i*RAWQ}'); lgc.issue('uw')
        b(f's_mov_b64 exec, -1')
        for c in range(4):
            b(f'ds_read_b64_tr_b16 {v(UT+2*c,2)}, v{vUS} offset:{i*RAWQ + 8*((c-1)&3)}'); lgc.issue(('ur', i))
    def ubuild2(i, b, lgc):
        for c in range(4):
            b(f'ds_write_b64 v{vUD}, {v(UT+2*c,2)} offset:{c*CPS + i*1024 + (8 if c == 0 else 0)}'); lgc.issue('uw')
    a('s_waitcnt lgkmcnt(0)')
    a(f's_bitcmp1_b32 s{sCH}, 1')
    a(f's_cselect_b32 s{sLD}, s{sLD+1}, s{sLD}')
    a(f's_cselect_b32 s{sDS}, s{sDS+1}, s{sDS}')
    a(f's_lshl_b32 s{sLD+1}, s{sLD}, 16')
    a(f's_lshl_b32 s{sDS+1}, s{sDS}, 16')
    a(f's_and_b32 s{sLD}, s{sLD}, 0xffff0000')
    a(f's_and_b32 s{sDS}, s{sDS}, 0xffff0000')
    a(f's_bitcmp1_b32 s{sCH}, 0')
    a(f's_cselect_b32 s{sLD}, s{sLD}, s{sLD+1}')
    a(f's_cselect_b32 s{sDS}, s{sDS}, s{sDS+1}')
    a(f's_cmp_eq_u32 s{sHW}, 0')
    a(f's_cselect_b32 s{sDS}, s{sDS}, 0')
    vDT = R.alloc(); vDK = R.alloc()
    a(f'v_mov_b32 v{vDT}, s{sLD}')
    a(f'v_mul_f32 v{vDT}, {LOG2E:#x}, v{vDT}')
    a(f'v_exp_f32 v{vDT}, v{vDT}')
    a(f'v_mov_b32 v{vDK}, 0')
    a(f'v_writelane_b32 v{vDK}, s{sDS}, 0')
    a(f'v_cvt_pk_bf16_f32 v{vDT}, v{vDT}, v{vDT}')
    a(f'v_and_b32 v{vDT}, 0xffff0000, v{vDT}')
    a(f's_cmp_lg_u32 s{sW}, 0')
    a(f's_cbranch_scc1 C_nozp')
    a(f'v_mov_b32 v{UT}, 0'); a(f'v_mov_b32 v{UT+1}, 0'); a(f'v_mov_b32 v{UT+2}, 0'); a(f'v_mov_b32 v{UT+3}, 0')
    a(f's_movk_i32 s{sTMP}, {CHS}')
    a(f'v_mul_u32_u24 v{t0}, s{sTMP}, v{t1}')
    a(f'v_bfe_u32 v{t3}, v{vL}, 2, 2')
    a(f's_movk_i32 s{sTMP}, {CPS}')
    a(f'v_mad_u32_u24 v{t0}, v{t3}, s{sTMP}, v{t0}')
    a(f'v_lshl_add_u32 v{t0}, v{t2}, 4, v{t0}')
    a(f'ds_write_b128 v{t0}, {v(UT,4)} offset:{UB}')
    a('C_nozp:')
    vFA = R.alloc()
    a(f'v_and_b32 v{t0}, 15, v{vL}')
    a(f'v_lshrrev_b32 v{t3}, 5, v{vL}')
    a(f's_movk_i32 s{sTMP}, 528')
    a(f'v_mul_u32_u24 v{vFA}, s{sTMP}, v{t3}')
    a(f'v_and_b32 v{t3}, 1, v{t1}')
    a(f'v_lshl_add_u32 v{vFA}, v{t3}, 8, v{vFA}')
    a(f'v_lshl_add_u32 v{vFA}, v{t0}, 4, v{vFA}')
    a(f'v_add_u32 v{vFA}, s{sTB}, v{vFA}')
    vm.wait('prm')
    stamp(a, 1)
    if PREF: pref_c()
    for i in range(6): a(f'v_lshlrev_b32 v{PRM+i}, 16, v{PRM+i}')
    vAR = R.alloc(); vAI = R.alloc()
    a(f'v_mul_f32 v{vAR}, v{vDT}, v{PRM}')
    a(f'v_mul_f32 v{vAI}, v{vDT}, v{PRM+1}')
    a(f'v_mul_f32 v{vAR}, {LOG2E:#x}, v{vAR}')
    a(f'v_mul_f32 v{vAI}, 0x3e22f983, v{vAI}')
    def pair(): return R.alloc(2)
    EE = {e: pair() for e in range(1, 8)}
    E8 = pair(); H = pair(); H2 = pair(); E128 = pair(); W0 = pair(); W1 = pair(); TP = [pair() for _ in range(4)]
    PK = R.alloc(4); pkb = R.alloc(2); DT_ = R.alloc(6)
    FB = R.alloc(16); FA = R.alloc(16); DD = R.alloc(12)
    def direct(dst, mult, ta, tb):
        b = Asm()
        b(f'v_mul_f32 v{ta}, {mult}, v{vAR}')
        b(f'v_mul_f32 v{tb}, {mult}, v{vAI}')
        b(f'v_exp_f32 v{ta}, v{ta}')
        b(f'v_fract_f32 v{tb}, v{tb}')
        b(f'v_cos_f32 v{dst}, v{tb}')
        b(f'v_sin_f32 v{dst+1}, v{tb}')
        b(f'v_pk_mul_f32 {v(dst,2)}, {v(dst,2)}, {v(ta,2)} op_sel:[0,0] op_sel_hi:[1,0]')
        return b
    w = Asm()
    w(f'v_pk_mul_f32 {v(PRM+2,2)}, {v(PRM+2,2)}, {v(vDT & ~1,2)} op_sel:[0,{vDT&1}] op_sel_hi:[1,{vDT&1}]')
    cmul(w, W0, PRM + 4, PRM + 2)
    w(f'v_xor_b32 v{W0+1}, 0x80000000, v{W0+1}')
    a.extend(interleave(direct(E8, '0x41000000', DT_, DT_+1), direct(EE[1], '1.0', DT_+2, DT_+3), direct(E128, '0x43000000', DT_+4, DT_+5), w))
    a(f'v_xor_b32 v{E8+1}, 0x80000000, v{E8+1}')
    xload(0)
    sb = Asm()
    cur, nxt = W0, W1
    for j in range(16):
        sb(f'v_cvt_pk_bf16_f32 v{pkb+j%2}, v{cur}, v{cur+1}')
        sb(f'ds_write_b32 v{vTA}, v{pkb+j%2} offset:{j*TROW}')
        if j < 15:
            cmul(sb, nxt, cur, E8); cur, nxt = nxt, cur
    cnt = [0, 0]
    def put(b, off, src):
        p = PK + cnt[0] % 4; cnt[0] += 1
        b(f'v_cvt_pk_bf16_f32 v{p}, v{src}, v{src+1}')
        b(f'ds_write_b32 v{vTA}, v{p} offset:{off}')
    def putmul(b, off, x, y):
        t = TP[cnt[1] % 4]; cnt[1] += 1
        cmul(b, t, x, y); put(b, off, t)
    sa = Asm()
    r1 = lambda r: TREG + r * TROW
    sa(f'v_mov_b32 v{PK+3}, 0x3f80')
    sa(f'ds_write_b32 v{vTA}, v{PK+3} offset:{r1(0)}')
    put(sa, r1(1), EE[1]); put(sa, r1(8), E128)
    cmul(sa, EE[2], EE[1], EE[1]); putmul(sa, r1(9), E128, EE[1]); put(sa, r1(2), EE[2])
    cmul(sa, EE[3], EE[2], EE[1]); cmul(sa, EE[4], EE[2], EE[2]); putmul(sa, r1(10), E128, EE[2])
    put(sa, r1(3), EE[3]); put(sa, r1(4), EE[4])
    cmul(sa, EE[5], EE[4], EE[1]); cmul(sa, EE[6], EE[4], EE[2]); cmul(sa, EE[7], EE[4], EE[3])
    for e in (5, 6, 7): put(sa, r1(e), EE[e])
    for e in range(3, 8): putmul(sa, r1(8 + e), E128, EE[e])
    mid = Asm(); merge(mid, sa, sb, 1, 1)
    a.ins += mid.ins[:60]
    xload(1)
    a.ins += mid.ins[60:]
    def frag(dst, region):
        for ks in range(4): a(f'ds_read_b128 {v(dst+4*ks,4)}, v{vFA} offset:{region*TREG + ks*1056}')
    def mm(d, first_c):
        for ks in range(4):
            a(f'v_mfma_f32_16x16x32_bf16 {v(DD+4*d,4)}, {v(FA+4*ks,4)}, {v(FB+4*ks,4)}, {"0" if ks==0 else v(DD+4*d,4)}')
    frag(FB, 0); frag(FA, 1)
    xload(2)
    HS = {1: E128}
    HB = [H, H2, W0, W1]
    s1 = Asm()
    cmul(s1, H, E128, E128)
    cmul(s1, H2, H, E128)
    cmul(s1, E8, H, H)
    put(s1, 0*TROW, H)
    for e in range(1, 4): putmul(s1, e*TROW, H, EE[2*e])
    put(s1, 4*TROW, H2)
    for e in range(1, 4): putmul(s1, (4+e)*TROW, H2, EE[2*e])
    cmul(s1, EE[1], E8, E128); cmul(s1, EE[3], E8, H); cmul(s1, EE[5], E8, H2)
    for i, src in enumerate((E8, EE[1], EE[3], EE[5])):
        put(s1, (8+2*i)*TROW, src); putmul(s1, (9+2*i)*TROW, src, EE[4])
    k = 12
    a.ins += s1.ins[:k]
    a('s_waitcnt lgkmcnt(2)')
    assert sum(1 for x in s1.ins[:k] if x.ds) == 2
    mm(0, True)
    a.ins += s1.ins[k:]
    frag(FA, 0)
    xload(3)
    if PREF:
        srd(a, SP[1], P_WO, 0x80000)
        a(f's_lshl_b32 s{sTMP+2}, s{sJ}, 3')
        a(f's_add_u32 s{sTMP+2}, s{sTMP+2}, s{sW}')
        a(f's_lshl_b32 s{sTMP+2}, s{sTMP+2}, 13')
        a(f'v_lshlrev_b32 v{t3}, 7, v{vL}')
        a(f'buffer_load_dword v{vZ}, v{t3}, {s(SP[1],4)}, s{sTMP+2} offen'); vm.issue('pf')
    s2 = Asm()
    cmul(s2, W0, E8, E8)
    put(s2, r1(0), W0)
    for i, src in enumerate((EE[1], EE[3], EE[5])): putmul(s2, r1(1+i), E8, src)
    for i, src in enumerate((E8, EE[1], EE[3], EE[5], W0)): putmul(s2, r1(4+i), W0, src)
    k = 12
    a.ins += s2.ins[:k]
    nw = sum(1 for x in s2.ins[:k] if x.ds)
    a(f's_waitcnt lgkmcnt({nw})')
    mm(1, True)
    a.ins += s2.ins[k:]
    frag(FA, 1)
    vC0 = PK; vC1 = PK + 1; vC2 = PK + 2; vC3 = PK + 3
    a(f'v_lshrrev_b32 v{t3}, 1, v{t1}')
    a(f'v_lshlrev_b32 v{vC0}, 9, v{t3}')
    a(f'v_lshl_add_u32 v{vC0}, v{t0}, 5, v{vC0}')
    a(f'v_and_b32 v{t2}, 1, v{t1}')
    a(f'v_lshl_add_u32 v{vC0}, v{t2}, 4, v{vC0}')
    a(f'v_add_u32 v{vC0}, s{sTB}, v{vC0}')
    a(f'v_sub_u32 v{t2}, 4, v{t3}')
    a(f'v_lshlrev_b32 v{vC1}, v{t2}, v{t0}')
    a(f'v_lshl_add_u32 v{vC1}, v{t1}, 8, v{vC1}')
    a(f'v_add_u32 v{vC1}, s{sTB}, v{vC1}')
    a(f'v_mul_u32_u24 v{vC2}, 120, v{t3}')
    a(f'v_add_u32 v{vC2}, v{vC2}, v{vC1}')
    a(f'v_lshlrev_b32 v{vC3}, 8, v{t1}')
    a(f'v_lshl_add_u32 v{vC3}, v{t0}, 2, v{vC3}')
    a(f'v_add_u32 v{vC3}, s{sTB}, v{vC3}')
    a(f'v_add_f32 v{DD}, v{DD}, v{vDK}')
    a(f'ds_write_b128 v{vC0}, {v(DD,4)}')
    a(f'ds_write_b64 v{vC1}, {v(DD+4,2)} offset:1024')
    a(f'ds_write_b64 v{vC2}, {v(DD+6,2)} offset:1032')
    a('s_waitcnt lgkmcnt(3)')
    mm(2, True)
    ubuild(0, a, vm, lg)
    for r in range(4): a(f'ds_write_b32 v{vC3}, v{DD+8+r} offset:{2048 + 64*r}')
    a('s_waitcnt lgkmcnt(4)')
    ubuild2(0, a, lg)
    R.release(m)
    lg.wait_all()
    stamp(a, 2)
    a('s_barrier')
    m = R.mark()
    F = R.alloc(8); F2 = R.alloc(8); O1 = R.alloc(4); O2 = R.alloc(4); vKW = R.alloc(); vMK = R.alloc(); G = R.alloc(4)
    a(f's_mul_i32 s{sTMP+1}, s{sCH}, {2*TABW}')
    a(f's_add_u32 s{sTMP+1}, s{sTMP+1}, {TAB}')
    a(f'v_lshl_add_u32 v{t2}, v{t0}, 2, v{t1}')
    a(f's_lshl_b32 s{sTMP}, s{sHW}, 8')
    a(f's_add_u32 s{sTMP}, s{sTMP}, s{sTMP+1}')
    a(f'v_lshl_add_u32 v{t3}, v{t2}, 2, s{sTMP}')
    a(f'ds_read_b32 v{O2}, v{t3} offset:2048')
    a(f'ds_read_b32 v{O2+1}, v{t3} offset:2052')
    a(f'ds_read_b32 v{O2+2}, v{t3} offset:{2048+TABW}')
    a(f'ds_read_b32 v{O2+3}, v{t3} offset:{2052+TABW}')
    a(f's_movk_i32 s{sTMP+2}, 1280')
    a(f'v_mul_u32_u24 v{vKW}, s{sTMP+2}, v{t1}')
    a(f'v_lshl_add_u32 v{vKW}, v{t0}, 4, v{vKW}')
    a(f'v_add_u32 v{vKW}, s{sTMP+1}, v{vKW}')
    a(f's_cmp_eq_u32 s{sHW}, 1')
    a(f's_cbranch_scc1 C_exp1')
    a(f'v_lshrrev_b32 v{vMK}, 3, v{t0}')
    a(f'v_sub_u32 v{t3}, 5, v{vMK}')
    a(f'v_lshlrev_b32 v{t3}, v{t3}, v{t2}')
    a(f'v_lshl_add_u32 v{t3}, v{vMK}, 9, v{t3}')
    a(f'v_add_u32 v{t3}, s{sTMP+1}, v{t3}')
    a(f'ds_read_b128 {v(F,4)}, v{t3}')
    a(f'ds_read_b128 {v(F+4,4)}, v{t3} offset:16')
    a(f'ds_read_b128 {v(F2,4)}, v{t3} offset:{TABW}')
    a(f'ds_read_b128 {v(F2+4,4)}, v{t3} offset:{TABW+16}')
    a(f'v_sub_u32 v{vMK}, 0, v{vMK}')
    for k in range(4): a(f'v_mov_b32 v{O1+k}, 0')
    a(f'ds_write_b128 v{vKW}, {v(O1,4)} offset:{KROFF}')
    a('s_waitcnt lgkmcnt(0)')
    for k in range(4): a(f'v_pk_add_f32 {v(F+2*k,2)}, {v(F+2*k,2)}, {v(F2+2*k,2)}')
    for k, (x, y) in enumerate(((4, 3), (2, 2), (2, 1), (0, 0))):
        a(f'v_cvt_pk_bf16_f32 v{G+k}, v{F+x}, v{F+y}')
    for k, (x, y) in enumerate(((7, 6), (5, 4), (3, 2), (1, 0))):
        a(f'v_cvt_pk_bf16_f32 v{O1+k}, v{F+x}, v{F+y}')
    for k in range(4): a(f'v_bfi_b32 v{O1+k}, v{vMK}, v{G+k}, v{O1+k}')
    a(f'ds_write_b128 v{vKW}, {v(O1,4)} offset:{KROFF+256}')
    a(f's_branch C_exp2')
    a('C_exp1:')
    a(f'v_lshl_add_u32 v{t3}, v{t2}, 3, s{sTMP+1}')
    a(f'ds_read_b64 {v(F,2)}, v{t3} offset:1536')
    a(f'ds_read_b32 v{F+2}, v{t3} offset:1544')
    a(f'ds_read_b64 {v(F2,2)}, v{t3} offset:{1536+TABW}')
    a(f'ds_read_b32 v{F2+2}, v{t3} offset:{1544+TABW}')
    a('s_waitcnt lgkmcnt(0)')
    a(f'v_pk_add_f32 {v(F,2)}, {v(F,2)}, {v(F2,2)}')
    a(f'v_add_f32 v{F+2}, v{F+2}, v{F2+2}')
    for k, (x, y) in enumerate(((2, 2), (1, 1), (1, 0), (0, 0))):
        a(f'v_cvt_pk_bf16_f32 v{O1+k}, v{F+x}, v{F+y}')
    a(f'ds_write_b128 v{vKW}, {v(O1,4)} offset:{KROFF+512}')
    a('C_exp2:')
    a(f'v_pk_add_f32 {v(O2,2)}, {v(O2,2)}, {v(O2+2,2)}')
    a(f'v_and_b32 v{vMK}, 1, v{t1}')
    a(f'v_sub_u32 v{vMK}, 0, v{vMK}')
    a(f'v_bfi_b32 v{F}, v{vMK}, v{O2+1}, v{O2}')
    a(f'v_cvt_pk_bf16_f32 v{F+4}, v{O2+1}, v{O2+1}')
    a(f'v_cvt_pk_bf16_f32 v{F+5}, v{O2+1}, v{F}')
    a(f'v_cvt_pk_bf16_f32 v{F+6}, v{O2}, v{O2}')
    a(f'v_mov_b32 v{F+7}, v{F+6}')
    a(f's_lshl_b32 s{sTMP}, s{sHW}, 8')
    a(f'v_add_u32 v{t3}, s{sTMP}, v{vKW}')
    a(f'ds_write_b128 v{t3}, {v(F+4,4)} offset:{KROFF+768}')
    a(f's_lshl_b32 s{sTMP}, s{sHW}, 7')
    a(f'v_subrev_u32 v{vTA}, s{sTMP}, v{vKW}')
    R.release(m)
    vKA = vTA
    KT = R.alloc(128); ACC = R.alloc(32); AW = R.alloc(36); vUA = R.alloc(); vA1 = R.alloc()
    GX = XR
    a(f'v_and_b32 v{t2}, 3, v{vL}')
    a(f'v_add_u32 v{t2}, 1, v{t2}')
    a(f'v_and_b32 v{t3}, 3, v{t2}')
    a(f's_movk_i32 s{sTMP}, {CPS}')
    a(f'v_mul_u32_u24 v{vUA}, s{sTMP}, v{t3}')
    a(f'v_lshrrev_b32 v{t2}, 2, v{t2}')
    a(f'v_lshl_add_u32 v{vUA}, v{t2}, 3, v{vUA}')
    a(f'v_bfe_u32 v{t2}, v{vL}, 2, 2')
    a(f'v_sub_u32 v{t2}, v{t2}, v{t1}')
    a(f'v_lshlrev_b32 v{t2}, 4, v{t2}')
    a(f'v_add_u32 v{vUA}, v{vUA}, v{t2}')
    a(f's_mul_i32 s{sTMP}, s{sCH}, {CHS}')
    a(f's_lshl_b32 s{sTMP+1}, s{sHW}, 9')
    a(f's_add_u32 s{sTMP}, s{sTMP}, s{sTMP+1}')
    a(f's_add_u32 s{sTMP}, s{sTMP}, {UB + 48}')
    a(f'v_add_u32 v{vUA}, s{sTMP}, v{vUA}')
    steps = [(i, r8) for i in range(4) for r8 in range(8)]
    NA = 6
    def rdA(n):
        i, r8 = steps[n]; b = AW + 6 * (n % NA)
        def rd(txt): return lambda: (a(txt), lg.issue(('a', n)))
        return [rd(f'ds_read_b64 {v(b+2*r,2)}, v{vUA} offset:{64*(16*i+r8) + 8*r}') for r in range(3)]
    def rdK(r8):
        def rd(txt): return lambda: (a(txt), lg.issue(('a', r8)))
        return [rd(f'ds_read_b128 {v(KT+16*r8+4*e,4)}, v{vKA} offset:{KROFF + (16+16*e-r8)*16}') for e in range(4)]
    weave(a, rdA(0) + rdA(1), [])
    srd(a, SKV, P_WS, SZ_KV + SZ_FLG, WS_KV); srd(a, SWO, P_WO, 0x80000); srd(a, SGW, P_GW, 0x400)
    wo_lane(a, vWO, vL, t2)
    a(f'v_lshlrev_b32 v{vA1}, 4, v{vL}')
    lg.wait_all()
    stamp(a, 3)
    a('s_barrier')
    weave(a, rdK(0) + rdK(1), [])
    started = set()
    nextA = 2
    for n, (i, r8) in enumerate(steps):
        dist = 2 if n < 6 else 4
        f = []
        while nextA <= min(n + dist, 31):
            if nextA % 8 == 0:
                f.append(lambda: (lg.wait('uw'), a('s_barrier')))
            f += rdA(nextA)
            if nextA < 8: f += rdK(nextA)
            nextA += 1
        ub = 3 if i == 0 else 1
        if i < 3 and r8 == ub: f.append(lambda i=i: ubuild(i + 1, a, vm, lg))
        if i < 3 and r8 == ub + 1: f.append(lambda i=i: (lg.wait(('ur', i + 1)), ubuild2(i + 1, a, lg)))
        if n == 12:
            f.append(lambda: (zf_issue(a, SDB, vZ), vm.issue('zf'), wo_dma_setup(a, sW, S_CB, sTMP)))
        if 12 <= n < 20:
            f.append(lambda n=n: (wo_dma_one(a, 0, n - 12, SWO, vWO, sTMP), vm.issue('wo')))
        if n == 21:
            def gl():
                a(f's_lshl_b32 s{sTMP}, s{S_RT}, 15')
                a(f's_lshl_b32 s{sTMP+1}, s{sW}, 12')
                a(f's_add_u32 s{sTMP}, s{sTMP}, s{sTMP+1}')
                gate_loads(a, SX, SGW, vA1, GX, 4, sTMP)
            f.append(gl)
        lg.wait(('a', n))
        b = AW + 6 * (n % NA)
        mm = []
        for e in range(4 - i):
            for mt in range(2):
                acc = ACC + 8 * (i + e) + 4 * mt
                c = v(acc, 4) if acc in started else '0'; started.add(acc)
                mm.append(f'v_mfma_f32_16x16x32_bf16 {v(acc,4)}, {v(b+2*mt,4)}, {v(KT+16*r8+4*e,4)}, {c}')
        weave(a, mm, f)
        if r8 == 7: nstamp(a, 86 + 2*i)
    nflush(a, [(86, 4), (88, 5), (90, 14)])
    stamp(a, 6)
    a(f's_mul_i32 s{sTMP}, s{sCH}, {CHS}')
    a(f's_lshl_b32 s{sTMP+1}, s{sHW}, 10')
    a(f's_add_u32 s{sTMP}, s{sTMP}, s{sTMP+1}')
    a(f'v_lshl_add_u32 v{t3}, v{vL}, 4, s{sTMP}')
    a(f's_mul_i32 s{sTMP}, s{sCH}, {CHS}')
    a(f's_xor_b32 s{sTMP+1}, s{sTMP+1}, 1024')
    a(f's_add_u32 s{sTMP}, s{sTMP}, s{sTMP+1}')
    a(f'v_lshl_add_u32 v{t2}, v{vL}, 4, s{sTMP}')
    a(f's_cmp_eq_u32 s{sHW}, 1')
    a(f's_cbranch_scc1 C_x1')
    for k in range(4): a(f'ds_write_b128 v{t3}, {v(ACC+16+4*k,4)} offset:{UB + k*CPS}')
    a(f's_branch C_x2')
    a('C_x1:')
    for k in range(4): a(f'ds_write_b128 v{t3}, {v(ACC+4*k,4)} offset:{UB + k*CPS}')
    for k in range(16): a(f'v_mov_b32 v{ACC+k}, v{ACC+16+k}')
    a('C_x2:')
    a(f'v_lshlrev_b32 v{t3}, 5, v{t0}')
    a(f'v_lshl_add_u32 v{t3}, v{t1}, 3, v{t3}')
    a(f's_mul_i32 s{sTMP}, s{sCH}, {YS}')
    a(f's_lshl_b32 s{sTMP+1}, s{sHW}, 10')
    a(f's_add_u32 s{sTMP}, s{sTMP}, s{sTMP+1}')
    a(f's_add_u32 s{sTMP}, s{sTMP}, {YB}')
    a(f'v_add_u32 v{t3}, s{sTMP}, v{t3}')
    a('s_waitcnt lgkmcnt(0)')
    a('s_barrier')
    for k in range(4): a(f'ds_read_b128 {v(AW+4*k,4)}, v{t2} offset:{UB + k*CPS}')
    a(f'v_bfe_u32 v{t2}, v{vL}, 2, 2')
    a(f's_movk_i32 s{sTMP}, {YS}')
    a(f'v_mul_u32_u24 v{t2}, s{sTMP}, v{t2}')
    a(f'v_lshl_add_u32 v{t2}, v{t1}, 5, v{t2}')
    a(f'v_and_b32 v{vUA}, 3, v{vL}')
    a(f'v_lshl_add_u32 v{t2}, v{vUA}, 3, v{t2}')
    a(f's_lshl_b32 s{sTMP}, s{sW}, 8')
    a(f's_add_u32 s{sTMP}, s{sTMP}, {YB}')
    a(f'v_add_u32 v{t2}, s{sTMP}, v{t2}')
    a('s_waitcnt lgkmcnt(0)')
    for k in range(8): a(f'v_pk_add_f32 {v(ACC+2*k,2)}, {v(ACC+2*k,2)}, {v(AW+2*k,2)}')
    for jj in range(2):
        for par in range(2):
            for k in range(2): a(f'v_cvt_pk_bf16_f32 v{AW+16+4*jj+2*par+k}, v{ACC+8*jj+4*k+par}, v{ACC+8*jj+4*k+par+2}')
            a(f'ds_write_b64 v{t3}, {v(AW+16+4*jj+2*par,2)} offset:{jj*512 + par*2048}')
    a(f'v_lshlrev_b32 v{t3}, 4, v{vL}')
    a(f's_lshl_b32 s{sTMP}, s{sCG}, 14')
    a(f's_lshl_b32 s{sTMP+1}, s{sW}, 11')
    a(f's_add_u32 s{sTMP}, s{sTMP}, s{sTMP+1}')
    a('s_waitcnt lgkmcnt(0)')
    a('s_barrier')
    for it in range(4): a(f'ds_read_b64_tr_b16 {v(KT+2*it,2)}, v{t2} offset:{(it>>1)*128 + (it&1)*2048}')
    a('s_waitcnt vmcnt(0)')
    for it in range(2):
        a(f's_waitcnt lgkmcnt({2-2*it})')
        a(f'buffer_store_dwordx4 {v(KT+4*it,4)}, v{t3}, {s(SB4,4)}, s{sTMP} offen offset:{it*1024} sc1')
    stamp(a, 7)
    a.extend(gate_math(GX, GX + 16, GX + 20, V_G0))
    a(f's_lshl_b32 s{S_GN}, s{sW}, 4')
    a(f's_or_b32 s{S_GN}, s{S_GN}, 256')
    a('s_waitcnt vmcnt(0)')
    stamp(a, 8)
    zf_check(a, SDB, vZ, sTMP, 'C_z')
    a(f's_lshl_b32 s{sTMP}, s{sW}, 7')
    a(f's_add_u32 s{sTMP}, s{sTMP}, s{sCG}')
    a(f's_lshl_b32 s{sTMP}, s{sTMP}, 2')
    a(f's_add_u32 s{sTMP}, s{sTMP}, {F_B}')
    set_flag(a, SKV, sTMP, t0)
    a(f's_mov_b32 s{S_LATE}, 1')
    a('s_barrier')
    return R.hi
```

```python
from common import *

POLL_SLEEP = int(os.environ.get('PSLEEP', '4'))
def poll(a, lbl, load, test, st, sleep=4):
    a(f's_mov_b32 s{st}, 0')
    a(f'{lbl}_a:')
    load()
    a(f's_add_u32 s{st}, s{st}, 1')
    a(f's_cmp_ge_u32 s{st}, {SPIN_MAX}')
    a(f's_cbranch_scc1 K_end')
    a('s_waitcnt vmcnt(0)')
    test()
    a(f's_cbranch_scc1 {lbl}_b')
    a(f's_sleep {sleep}')
    a(f's_branch {lbl}_a')
    a(f'{lbl}_b:')

def gen_F(a):
    sRT, sCB = S_RT, S_CB
    R = Regs('v', 1, 250)
    SPQ, SKV, SX, SB4, SGW, SOUT = 4, 8, 12, 16, 20, 24
    sW, sTMP, sSO, sCG0, sBF = 72, 76, 80, 84, 85
    vm = Cnt(a, 'vmcnt', 63); lg = Cnt(a, 'lgkmcnt', 15)
    vL = R.alloc(); t0 = R.alloc(); t1 = R.alloc(); t2 = R.alloc(); t3 = R.alloc(); vG = R.alloc(); vWA = R.alloc(); vOA = R.alloc()
    vA1 = R.alloc(); vF = R.alloc(); vB = R.alloc()
    KVF = R.alloc(32); ZF = R.alloc(8); PQ = R.alloc(32); BB = R.alloc(4)
    KB = R.alloc(16); ZB = R.alloc(4); ZH = R.alloc(16); NUM = R.alloc(32); DEN = R.alloc(32); OP = R.alloc(16); ACC = R.alloc(16)
    a(f'v_lshlrev_b32 v{vA1}, 4, v{vL}')
    srd(a, SKV, P_WS, SZ_KV + SZ_FLG, WS_KV); srd(a, SPQ, P_WS, SZ_PHIQ, WS_PHIQ)
    srd(a, SB4, P_WS, SZ_B4, WS_B4); srd(a, SOUT, P_OUT, 0x200000)
    a(f'v_and_b32 v{t0}, 15, v{vL}')
    a(f'v_lshrrev_b32 v{t1}, 4, v{vL}')
    a(f'v_lshrrev_b32 v{t3}, 5, v{vL}')
    a(f'v_lshlrev_b32 v{vOA}, 9, v{t3}')
    a(f'v_lshl_add_u32 v{vOA}, v{t0}, 4, v{vOA}')
    a(f'v_and_b32 v{t2}, 1, v{t1}')
    a(f'v_lshl_add_u32 v{vOA}, v{t2}, 3, v{vOA}')
    a(f's_lshl_b32 s{sTMP}, s{sW}, 12')
    a(f's_add_u32 s{sTMP}, s{sTMP}, {L_O}')
    a(f'v_add_u32 v{vOA}, s{sTMP}, v{vOA}')
    a(f'v_bfe_u32 v{t2}, v{vL}, 2, 2')
    a(f'v_lshl_add_u32 v{vWA}, v{t3}, 3, v{t2}')
    a(f'v_lshlrev_b32 v{vWA}, 8, v{vWA}')
    a(f's_and_b32 s{sTMP}, s{sW}, 3')
    a(f'v_xor_b32 v{t2}, s{sTMP}, v{t2}')
    a(f'v_lshl_add_u32 v{vWA}, v{t2}, 6, v{vWA}')
    a(f'v_and_b32 v{t2}, 1, v{t1}')
    a(f'v_lshl_add_u32 v{vWA}, v{t2}, 5, v{vWA}')
    a(f'v_and_b32 v{t2}, 3, v{vL}')
    a(f'v_lshl_add_u32 v{vWA}, v{t2}, 3, v{vWA}')
    a(f's_cmp_lt_u32 s{sW}, 4')
    a(f's_mov_b32 s{sTMP}, {L_WOA}')
    a(f's_cselect_b32 s{sTMP}, s{sTMP}, {L_WOB}')
    a(f'v_add_u32 v{vWA}, s{sTMP}, v{vWA}')
    a(f'v_and_b32 v{t2}, 31, v{vL}')
    a(f'v_lshlrev_b32 v{vB}, 3, v{t2}')
    a(f'v_lshl_add_u32 v{vB}, v{t3}, 14, v{vB}')
    a(f's_and_b32 s{sTMP}, s{sW}, 3')
    a(f's_lshl_b32 s{sTMP}, s{sTMP}, 3')
    a(f's_lshr_b32 s{sTMP+1}, s{sW}, 2')
    a(f's_lshl_b32 s{sTMP+1}, s{sTMP+1}, 2')
    a(f's_add_u32 s{sTMP}, s{sTMP}, s{sTMP+1}')
    a(f's_lshl_b32 s{sTMP+1}, s{sCB}, 5')
    a(f's_add_u32 s{sCG0}, s{sTMP}, s{sTMP+1}')
    stamp(a, 9)
    SWO = 28
    srd(a, SWO, P_WO, 0x80000)
    wo_lane(a, vF, vL, t2)
    def late(lbl):
        wo8_setup(a, sW, sTMP)
        a(f's_cmp_eq_u32 s{S_LATE}, 0')
        a(f's_cbranch_scc1 {lbl}')
        for t in range(4): a(wo8(2, t, SWO, vF, sTMP))
        a(f'{lbl}:')
        for t in range(4): a(wo8(3, t, SWO, vF, sTMP))
    a(f's_and_b32 s{sSO}, s2, 31')
    a(f's_lshl_b32 s{sSO}, s{sSO}, 7')
    a(f's_add_u32 s{sSO}, s{sSO}, {F_KV}')
    a(f's_lshl_b32 s{sTMP}, s{sW}, 12')
    a(f's_add_u32 s{sTMP}, s{sTMP}, {L_O}')
    a(f'v_mov_b32 v{vG}, s{sTMP}')
    a(f's_cmp_lg_u32 s{sW}, 0')
    a(f's_cbranch_scc1 F_l0')
    a(f'buffer_load_dword v{KVF}, off, {s(SKV,4)}, s{sSO} sc1')
    a(f'v_lshlrev_b32 v{t2}, 12, v{vL}')
    a(f'v_add_u32 v{t2}, {L_O}, v{t2}')
    a(f's_mov_b64 exec, 0xff')
    a('s_waitcnt vmcnt(0)')
    a(f'ds_write_b32 v{t2}, v{KVF}')
    a(f's_mov_b64 exec, -1')
    a('s_waitcnt lgkmcnt(0)')
    a('F_l0:')
    a('s_barrier')
    a(f'ds_read_b32 v{vG}, v{vG}')
    a('s_waitcnt lgkmcnt(0)')
    a(f'v_readfirstlane_b32 s{sSO+3}, v{vG}')
    a(f's_cmp_ge_u32 s{sSO+3}, 128')
    a(f's_cbranch_scc1 F_ready')
    late('F_l1')
    a(f's_cmp_lg_u32 s{sW}, 0')
    a(f's_cbranch_scc1 F_go')
    def test1():
        a(f'v_readfirstlane_b32 s{sTMP+3}, v{KVF}')
        a(f's_cmp_ge_u32 s{sTMP+3}, 128')
    poll(a, 'F_p1', lambda: a(f'buffer_load_dword v{KVF}, off, {s(SKV,4)}, s{sSO} sc1'), test1, sTMP + 2, POLL_SLEEP)
    a('F_go:')
    a('s_barrier')
    a('F_ready:')
    stamp(a, 10)
    a(f's_lshl_b32 s{sTMP}, s{sW}, 13')
    a(f's_add_u32 s{sTMP+1}, s{sTMP}, 4096')
    for i in range(8):
        a(f'buffer_load_dwordx4 {v(KVF+4*i,4)}, v{vA1}, {s(SKV,4)}, s{sTMP+(i>>2)} offen offset:{(i&3)*1024} sc1'); vm.issue(('kv', i))
    a(f'v_and_b32 v{t2}, 3, v{vL}')
    a(f'v_lshlrev_b32 v{t2}, 5, v{t2}')
    a(f'v_lshl_add_u32 v{t2}, v{t1}, 7, v{t2}')
    a(f's_lshl_b32 s{sTMP}, s{sW}, 9')
    a(f's_add_u32 s{sTMP}, s{sTMP}, 65536')
    for k in range(2):
        a(f'buffer_load_dwordx4 {v(ZF+4*k,4)}, v{t2}, {s(SKV,4)}, s{sTMP} offen offset:{16*k} sc1'); vm.issue('z')
    a(f's_lshr_b32 s{sBF}, s{sRT}, 3')
    a(f's_lshl_b32 s{sBF}, s{sBF}, 7')
    a(f's_add_u32 s{sBF}, s{sBF}, s{sCG0}')
    a(f's_lshl_b32 s{sBF}, s{sBF}, 2')
    a(f's_add_u32 s{sBF}, s{sBF}, {F_B}')
    a(f'buffer_load_dwordx4 {v(BB,4)}, off, {s(SKV,4)}, s{sBF} sc1')
    def pqload():
        a(f's_lshl_b32 s{sTMP+2}, s{sRT}, 16')
        a(f's_lshl_b32 s{sTMP+3}, s{sW}, 13')
        a(f's_add_u32 s{sTMP+2}, s{sTMP+2}, s{sTMP+3}')
        a(f's_add_u32 s{sTMP+3}, s{sTMP+2}, 4096')
        a(f'v_lshlrev_b32 v{t2}, 4, v{t0}')
        a(f'v_lshl_add_u32 v{t2}, v{t1}, 9, v{t2}')
        for i in range(4):
            for st in range(2):
                a(f'buffer_load_dwordx4 {v(PQ+8*i+4*st,4)}, v{t2}, {s(SPQ,4)}, s{sTMP+2+(i>>1)} offen offset:{(i&1)*2048+st*256} sc1')
    def kvconv(extra):
        a(f's_lshl_b32 s{sTMP}, s{sW}, 12')
        a(f's_add_u32 s{sTMP}, s{sTMP}, {L_O}')
        a(f'v_lshl_add_u32 v{t2}, v{vL}, 3, s{sTMP}')
        a(f'v_lshlrev_b32 v{vF}, 6, v{t0}')
        a(f'v_lshl_add_u32 v{vF}, v{t1}, 4, v{vF}')
        a(f'v_add_u32 v{vF}, s{sTMP}, v{vF}')
        for i in range(8):
            a(f's_waitcnt vmcnt({10 - i + extra})')
            for k in range(2): a(f'v_cvt_pk_bf16_f32 v{OP+2*i+k}, v{KVF+4*i+2*k}, v{KVF+4*i+2*k+1}')
            a(f'ds_write_b64 v{t2}, {v(OP+2*i,2)} offset:{i*512}')
            if i % 2: a(f'ds_read_b128 {v(KB+2*(i-1),4)}, v{vF} offset:{(i>>1)*1024}')
        a(f's_waitcnt vmcnt({1 + extra})')
        for i in range(4): a(f'v_cvt_pk_bf16_f32 v{ZB+i}, v{ZF+2*i}, v{ZF+2*i+1}')
        for h in range(4):
            for i in range(4):
                a(f'v_mov_b32_dpp v{ZH+4*h+i}, v{ZB+i} quad_perm:[{h},{h},{h},{h}] row_mask:0xf bank_mask:0xf')
    vm.q = []
    pqload()
    def block(extra):
        kvconv(8 + extra)
        for h in range(4):
            a(f's_waitcnt vmcnt({6-2*h+extra})')
            for st in range(2):
                a(f'v_mfma_f32_16x16x32_bf16 {v(DEN+4*(2*h+st),4)}, {v(ZH+4*h,4)}, {v(PQ+4*(2*h+st),4)}, 0')
    a(f's_cmp_lt_u32 s{sSO+3}, 128')
    a(f's_cbranch_scc1 F_l3')
    wo8_setup(a, sW, sTMP)
    for t in range(4): a(wo8(3, t, SWO, vF, sTMP))
    a(f's_cmp_eq_u32 s{S_LATE}, 0')
    a(f's_cbranch_scc1 F_l2')
    for t in range(4): a(wo8(2, t, SWO, vF, sTMP))
    block(8)
    a('s_branch F_l4')
    a('F_l2:')
    block(4)
    a('s_branch F_l4')
    a('F_l3:')
    block(0)
    a('F_l4:')
    stamp(a, 11)
    a('s_waitcnt lgkmcnt(0)')
    for u in range(8):
        a(f'v_mfma_f32_16x16x32_bf16 {v(NUM+4*u,4)}, {v(KB+4*(u>>1),4)}, {v(PQ+4*u,4)}, 0')
        a(f'v_add_f32 v{DEN+4*u}, 0x358637bd, v{DEN+4*u}')
        a(f'v_rcp_f32 v{DEN+4*u}, v{DEN+4*u}')
    for u in range(8):
        for k in range(2):
            a(f'v_pk_mul_f32 {v(NUM+4*u+2*k,2)}, {v(NUM+4*u+2*k,2)}, {v(DEN+4*u,2)} op_sel:[0,0] op_sel_hi:[1,0]')
        for k in range(2): a(f'v_cvt_pk_bf16_f32 v{OP+2*u+k}, v{NUM+4*u+2*k}, v{NUM+4*u+2*k+1}')
        a(f'ds_write_b64 v{vOA}, {v(OP+2*u,2)} offset:{(u>>1)*1024 + (u&1)*256}')
    a('s_waitcnt vmcnt(0)')
    def testb():
        a(f'v_and_b32 v{BB}, v{BB}, v{BB+1}')
        a(f'v_and_b32 v{BB+2}, v{BB+2}, v{BB+3}')
        a(f'v_and_b32 v{BB}, v{BB}, v{BB+2}')
        a(f'v_readfirstlane_b32 s{sTMP+3}, v{BB}')
        a(f's_cmp_eq_u32 s{sTMP+3}, 1')
    testb()
    a(f's_cselect_b32 s{sSO+1}, 1, 0')
    a(f's_lshl_b32 s{sSO+2}, s{sCG0}, 14')
    a(f's_lshl_b32 s{sTMP+1}, s{sRT}, 8')
    a(f's_add_u32 s{sSO+2}, s{sSO+2}, s{sTMP+1}')
    a(f's_add_u32 s{sSO+3}, s{sSO+2}, 32768')
    def loadb():
        a(f'buffer_load_dwordx2 {v(BB,2)}, v{vB}, {s(SB4,4)}, s{sSO+2} offen sc1')
        a(f'buffer_load_dwordx2 {v(BB+2,2)}, v{vB}, {s(SB4,4)}, s{sSO+3} offen sc1')
    a(f's_cmp_eq_u32 s{sSO+1}, 0')
    a(f's_cbranch_scc1 F_nob1')
    loadb()
    a('F_nob1:')
    a(f's_lshr_b32 s{sTMP}, s{sW}, 2')
    a(f's_lshl_b32 s{sTMP}, s{sTMP}, 14')
    a(f's_add_u32 s{sTMP}, s{sTMP}, {L_O}')
    a(f'v_add_u32 v{t2}, s{sTMP}, v{vA1}')
    a('s_waitcnt lgkmcnt(0)')
    stamp(a, 12)
    a('s_barrier')
    FO = NUM; FW = DEN
    def rd(h):
        def r1(txt): return lambda: (a(txt), lg.issue(h))
        return [r1(f'ds_read_b128 {v(FO+4*(h%8),4)}, v{t2} offset:{h*1024}')] + [r1(f'ds_read_b64_tr_b16 {v(FW+4*(h%8)+2*r,2)}, v{vWA} offset:{(16*h+4*r)*256}') for r in range(2)]
    for h in range(5): weave(a, rd(h), [])
    for h in range(16):
        lg.wait(h)
        weave(a, [f'v_mfma_f32_32x32x16_bf16 {v(ACC,16)}, {v(FW+4*(h%8),4)}, {v(FO+4*(h%8),4)}, {"0" if h==0 else v(ACC,16)}'], rd(h + 5) if h + 5 < 16 else [])
    stamp(a, 13)
    a('s_barrier')
    a(f's_lshl_b32 s{sTMP}, s{sW}, 11')
    a(f's_add_u32 s{sTMP}, s{sTMP}, {L_O}')
    a(f'v_add_u32 v{t2}, s{sTMP}, v{vA1}')
    a(f'v_xor_b32 v{vF}, 8192, v{t2}')
    a(f'v_and_b32 v{t0}, 1, v{t1}')
    a(f'v_lshlrev_b32 v{t0}, 3, v{t0}')
    a(f'v_lshl_add_u32 v{t0}, v{t3}, 2, v{t0}')
    a(f's_cmp_eq_u32 s{S_GN}, -1')
    a(f's_cbranch_scc1 F_nog')
    a(f's_and_b32 s{sTMP}, s{S_GN}, 0xff')
    a(f's_add_u32 s{sTMP}, s{sTMP}, {L_O + 16384}')
    a(f'v_add_u32 v{t0}, s{sTMP}, v{t0}')
    a(f'ds_write_b32 v{t0}, v{V_G0}')
    a(f's_bitcmp1_b32 s{S_GN}, 8')
    a(f's_cbranch_scc1 F_nog')
    a(f'ds_write_b32 v{t0}, v{V_G1} offset:16')
    a('F_nog:')
    a(f's_cmp_ge_u32 s{sW}, 4')
    a(f's_cbranch_scc1 F_x1')
    for k in range(2): a(f'ds_write_b128 v{t2}, {v(ACC+8+4*k,4)} offset:{k*1024}')
    a(f's_branch F_x2')
    a('F_x1:')
    for k in range(2): a(f'ds_write_b128 v{t2}, {v(ACC+4*k,4)} offset:{k*1024}')
    for k in range(8): a(f'v_mov_b32 v{ACC+k}, v{ACC+8+k}')
    a('F_x2:')
    a(f's_cmp_eq_u32 s{sSO+1}, 1')
    a(f's_cbranch_scc1 F_hasb')
    poll(a, 'F_p3', lambda: a(f'buffer_load_dwordx4 {v(BB,4)}, off, {s(SKV,4)}, s{sBF} sc1'), testb, sTMP + 2)
    loadb()
    a('F_hasb:')
    a(f'v_and_b32 v{t0}, 31, v{vL}')
    a(f'v_lshlrev_b32 v{t1}, 2, v{t0}')
    a(f'v_add_u32 v{t1}, {L_O}, v{t1}')
    a(f'v_lshlrev_b32 v{t0}, 10, v{t0}')
    a(f'v_lshl_add_u32 v{t0}, v{t3}, 4, v{t0}')
    a(f's_lshl_b32 s{sTMP}, s{sRT}, 15')
    a(f's_lshl_b32 s{sTMP+1}, s{sCG0}, 3')
    a(f's_add_u32 s{sTMP}, s{sTMP}, s{sTMP+1}')
    a('s_waitcnt lgkmcnt(0)')
    a('s_barrier')
    G2 = FW; BU = FW + 8
    a(f'ds_read_b32 v{G2}, v{t1} offset:{16384}')
    for k in range(2): a(f'ds_read_b128 {v(FO+4*k,4)}, v{vF} offset:{k*1024}')
    a('s_waitcnt vmcnt(0)')
    for k in range(4):
        a(f'v_lshlrev_b32 v{BU+2*k}, 16, v{BB+k}')
        a(f'v_and_b32 v{BU+2*k+1}, 0xffff0000, v{BB+k}')
    a('s_waitcnt lgkmcnt(2)')
    a(f'v_sub_f32 v{G2+1}, 1.0, v{G2}')
    a(f'v_cvt_pk_bf16_f32 v{G2+1}, v{G2+1}, v{G2+1}')
    a(f'v_and_b32 v{G2+1}, 0xffff0000, v{G2+1}')
    for k in range(4): a(f'v_pk_mul_f32 {v(BU+2*k,2)}, {v(BU+2*k,2)}, {v(G2,2)} op_sel:[0,1] op_sel_hi:[1,1]')
    a('s_waitcnt lgkmcnt(0)')
    for k in range(4): a(f'v_pk_add_f32 {v(ACC+2*k,2)}, {v(ACC+2*k,2)}, {v(FO+2*k,2)}')
    for k in range(4): a(f'v_pk_fma_f32 {v(ACC+2*k,2)}, {v(ACC+2*k,2)}, {v(G2,2)}, {v(BU+2*k,2)} op_sel:[0,0,0] op_sel_hi:[1,0,1]')
    for k in range(4): a(f'v_cvt_pk_bf16_f32 v{FO+8+k}, v{ACC+2*k}, v{ACC+2*k+1}')
    a(f'v_permlane32_swap_b32 v{FO+8}, v{FO+10}')
    a(f'v_permlane32_swap_b32 v{FO+9}, v{FO+11}')
    a(f'buffer_store_dwordx4 {v(FO+8,4)}, v{t0}, {s(SOUT,4)}, s{sTMP} offen')
    trace_out(a, 1, sW)
    a('s_endpgm')
    return R.hi
```

```python
from common import *

def feat_mm(a, src, wf, D):
    a(f'v_mfma_f32_32x32x16_bf16 {v(D,16)}, {v(wf,4)}, {v(src,4)}, 0')
    a(f'v_mfma_f32_32x32x16_bf16 {v(D,16)}, {v(wf+4,4)}, {v(src+4,4)}, {v(D,16)}')

def feat(D, E, T, P, sL):
    A = Asm(); B = Asm(); a = Asm()
    mx, mn = T, T + 1
    for x, op, m, tmp in ((A, 'max', mx, T + 2), (B, 'min', mn, T + 3)):
        x(f'v_{op}3_f32 v{m}, v{D}, v{D+1}, v{D+2}')
        x(f'v_{op}3_f32 v{tmp}, v{D+3}, v{D+4}, v{D+5}')
        for i in (6, 10):
            x(f'v_{op}3_f32 v{m}, v{m}, v{D+i}, v{D+i+1}')
            x(f'v_{op}3_f32 v{tmp}, v{tmp}, v{D+i+2}, v{D+i+3}')
        x(f'v_{op}3_f32 v{m}, v{m}, v{D+14}, v{D+15}')
        x(f'v_{op}_f32 v{m}, v{m}, v{tmp}')
    a.extend(interleave(A, B))
    a(f'v_pk_mul_f32 {v(mx,2)}, {v(mx,2)}, {s(sL,2)} neg_lo:[0,1]')
    for i in range(8):
        a(f'v_pk_fma_f32 {v(E+2*i,2)}, {v(D+2*i,2)}, {s(sL,2)}, {v(mx,2)} op_sel:[0,0,1] op_sel_hi:[1,1,1] neg_lo:[1,0,0] neg_hi:[1,0,0]')
        a(f'v_pk_fma_f32 {v(D+2*i,2)}, {v(D+2*i,2)}, {s(sL,2)}, {v(mx,2)} op_sel:[0,0,0] op_sel_hi:[1,1,0]')
    for i in range(16):
        a(f'v_exp_f32 v{D+i}, v{D+i}')
        a(f'v_exp_f32 v{E+i}, v{E+i}')
    A = Asm(); B = Asm()
    for x, S, p0, p1, sd in ((A, D, P, P + 2, T + 4), (B, E, P + 4, P + 6, T + 5)):
        x(f'v_pk_add_f32 {v(p0,2)}, {v(S,2)}, {v(S+2,2)}')
        x(f'v_pk_add_f32 {v(p1,2)}, {v(S+4,2)}, {v(S+6,2)}')
        x(f'v_pk_add_f32 {v(p0,2)}, {v(p0,2)}, {v(S+8,2)}')
        x(f'v_pk_add_f32 {v(p1,2)}, {v(p1,2)}, {v(S+10,2)}')
        x(f'v_pk_add_f32 {v(p0,2)}, {v(p0,2)}, {v(S+12,2)}')
        x(f'v_pk_add_f32 {v(p1,2)}, {v(p1,2)}, {v(S+14,2)}')
        x(f'v_pk_add_f32 {v(p0,2)}, {v(p0,2)}, {v(p1,2)}')
        x(f'v_add_f32 v{sd}, v{p0}, v{p0+1}')
        x(f'v_rcp_f32 v{sd}, v{sd}')
    a.extend(interleave(A, B))
    for i in range(8):
        a(f'v_pk_mul_f32 {v(D+2*i,2)}, {v(D+2*i,2)}, {v(T+4,2)} op_sel:[0,0] op_sel_hi:[1,0]')
        a(f'v_pk_mul_f32 {v(E+2*i,2)}, {v(E+2*i,2)}, {v(T+4,2)} op_sel:[0,1] op_sel_hi:[1,1]')
    for i in range(8): a(f'v_cvt_pk_bf16_f32 v{P+i}, v{D+2*i}, v{D+2*i+1}')
    for i in range(8): a(f'v_cvt_pk_bf16_f32 v{P+8+i}, v{E+2*i}, v{E+2*i+1}')
    return a

SLOT = 40960
WPS = 65536
HO = 32768
V_LDS = 49152
PK_LDS = 65536

def gen_G(a, sE, sJ):
    SW_, SX, SPH, SDB, SPQ, SKV, SWO, SGW = 4, 8, 12, 16, 20, 24, 28, 32
    sW, sRB, sHG, sM0, sTMP, sJ4, sSO, sRT, sHP, sL = 72, 73, 74, 75, 76, 80, 81, 88, 89, 90
    R = Regs('v', 1, 250)
    vL = R.alloc(); t0 = R.alloc(); t1 = R.alloc(); t2 = R.alloc(); vA1 = R.alloc(); vZ = R.alloc(); vWO = R.alloc()
    WR = R.alloc(4); WP = R.alloc(8); KP = R.alloc(8); QP = R.alloc(8)
    base = R.mark()
    a(f'v_lshrrev_b32 v{t0}, 6, v0')
    a(f'v_and_b32 v{vL}, 63, v0')
    a(f'v_readfirstlane_b32 s{sW}, v{t0}')
    a(f's_lshr_b32 s{sRB}, s{sE}, 1')
    a(f's_lshl_b32 s{sRB}, s{sRB}, 2')
    a(f's_lshr_b32 s{sTMP}, s{sJ}, 2')
    a(f's_add_u32 s{sRB}, s{sRB}, s{sTMP}')
    a(f's_and_b32 s{sHG}, s{sE}, 1')
    a(f's_lshl_b32 s{sHG}, s{sHG}, 2')
    a(f's_and_b32 s{sTMP+1}, s{sJ}, 3')
    a(f's_add_u32 s{sHG}, s{sHG}, s{sTMP+1}')
    a(f's_and_b32 s{sJ4}, s{sW}, 3')
    a(f'v_lshlrev_b32 v{vA1}, 4, v{vL}')
    a('s_waitcnt lgkmcnt(0)')
    srd(a, SX, P_X, 0x200000); srd(a, SW_, P_W, 0x180000)
    a(f's_cmp_lt_u32 s{sW}, 4')
    a(f's_cbranch_scc1 G_compute')

    def common_setup():
        a(f's_and_b32 s{sRT}, s{sW}, 1')
        a(f's_lshl_b32 s{sRT}, s{sRT}, 1')
        a(f's_lshr_b32 s{sTMP}, s{sW}, 2')
        a(f's_add_u32 s{sRT}, s{sRT}, s{sTMP}')
        a(f's_lshr_b32 s{sHP}, s{sJ4}, 1')
        srd(a, SPH, P_PHI, 0x4000)
        a(f's_lshl_b32 s{sTMP}, s{sHG}, 11')
        a(f's_lshl_b32 s{sTMP+1}, s{sHP}, 10')
        a(f's_add_u32 s{sTMP}, s{sTMP}, s{sTMP+1}')
        a(f'buffer_load_dwordx4 {v(WR,4)}, v{vA1}, {s(SPH,4)}, s{sTMP} offen')
    def late_setup():
        srd(a, SPQ, P_WS, SZ_PHIQ, WS_PHIQ); srd(a, SWO, P_WO, 0x80000); srd(a, SGW, P_GW, 0x400)
        a(f's_mov_b32 s{sL}, {LOG2E:#x}'); a(f's_mov_b32 s{sL+1}, {LOG2E:#x}')
        wo_lane(a, vWO, vL, t0)
    def wphi_frags():
        a(f's_lshl_b32 s{sTMP}, s{sW}, 10')
        a(f's_add_u32 s{sTMP}, s{sTMP}, {WPS}')
        a(f'v_add_u32 v{t0}, s{sTMP}, v{vA1}')
        a(f'ds_write_b128 v{t0}, {v(WR,4)}')
        a(f'v_bfe_u32 v{t0}, v{vL}, 2, 2')
        a(f'v_lshrrev_b32 v{t2}, 5, v{vL}')
        a(f'v_lshl_add_u32 v{t0}, v{t2}, 2, v{t0}')
        a(f'v_lshlrev_b32 v{t0}, 5, v{t0}')
        a(f'v_and_b32 v{t2}, 1, v{vL}')
        a(f'v_lshl_add_u32 v{t0}, v{t2}, 9, v{t0}')
        a(f'v_bfe_u32 v{t2}, v{vL}, 1, 1')
        a(f'v_lshl_add_u32 v{t0}, v{t2}, 3, v{t0}')
        a(f'v_bfe_u32 v{t2}, v{vL}, 4, 1')
        a(f'v_lshl_add_u32 v{t0}, v{t2}, 4, v{t0}')
        a(f'v_add_u32 v{t0}, s{sTMP}, v{t0}')
        for rd in range(2): a(f'ds_read_b64_tr_b16 {v(WR+2*rd,2)}, v{t0} offset:{rd*256}')
    def wphi_mask():
        a(f'v_bfe_i32 v{t0}, v{vL}, 2, 1')
        for i in range(4): a(f'v_and_b32 v{WP+4+i}, v{t0}, v{WR+i}')
        for i in range(4): a(f'v_xor_b32 v{WP+i}, v{WP+4+i}, v{WR+i}')

    vm = Cnt(a, 'vmcnt', 63)
    vXa = R.alloc(); vXb = R.alloc(); vW1 = R.alloc(); ZR = R.alloc(4)
    a(f's_lshl_b32 s{sM0}, s{sJ4}, 12')
    a(f'v_lshrrev_b32 v{t0}, 3, v{vL}')
    a(f'v_and_b32 v{t1}, 7, v{vL}')
    a(f'v_lshrrev_b32 v{t2}, 1, v{t0}')
    a(f'v_xor_b32 v{t2}, v{t2}, v{t1}')
    a(f'v_lshlrev_b32 v{t2}, 4, v{t2}')
    a(f'v_lshl_add_u32 v{vXa}, v{t0}, 10, v{t2}')
    a(f's_lshl_b32 s{sTMP}, s{sRB}, 17')
    a(f's_lshl_b32 s{sTMP+1}, s{sJ4}, 15')
    a(f's_add_u32 s{sTMP}, s{sTMP}, s{sTMP+1}')
    a(f'v_add_u32 v{vXa}, s{sTMP}, v{vXa}')
    a(f'v_xor_b32 v{vXb}, 64, v{vXa}')
    def dmax(st):
        for t in range(4):
            a(f's_mov_b32 s{sSO}, {st*128 + t*8192}')
            a(f's_add_u32 m0, s{sM0}, {(st%4)*SLOT + t*1024}')
            a(f'buffer_load_dwordx4 v{vXa if t%2==0 else vXb}, {s(SX,4)}, s{sSO} offen lds'); vm.issue(('st', st))
    dmax(0)
    a(f'v_lshlrev_b32 v{t2}, 1, v{t0}')
    a(f'v_and_b32 v{t2}, 4, v{t2}')
    a(f'v_xor_b32 v{t2}, v{t2}, v{t1}')
    a(f'v_lshlrev_b32 v{t2}, 4, v{t2}')
    a(f's_movk_i32 s{sTMP}, 3072')
    a(f'v_mad_u32_u24 v{vW1}, v{t0}, s{sTMP}, v{t2}')
    a(f's_lshl_b32 s{sTMP}, s{sHG}, 7')
    a(f'v_add_u32 v{vW1}, s{sTMP}, v{vW1}')
    sU = 82
    a(f's_mul_i32 s{sTMP}, s{sJ4}, 6')
    a(f's_mul_i32 s{sTMP+3}, s{sJ4}, 6144')
    for i in range(6):
        a(f's_add_u32 s{sTMP+1}, s{sTMP}, {i}')
        a(f's_and_b32 s{sTMP+2}, s{sTMP+1}, 7')
        a(f's_mul_i32 s{sU+i}, s{sTMP+2}, {8*3072}')
        a(f's_lshr_b32 s{sTMP+1}, s{sTMP+1}, 3')
        a(f's_lshl_b32 s{sTMP+1}, s{sTMP+1}, 10')
        a(f's_add_u32 s{sU+i}, s{sU+i}, s{sTMP+1}')
    sMW = S_GN
    a(f's_mov_b32 s{sMW}, s{sTMP+3}')
    def dmaw(st):
        for i in range(6):
            a(f's_add_u32 s{sSO}, s{sU+i}, {st*64*3072}')
            a(f's_add_u32 m0, s{sMW}, {(st%4)*SLOT + 16384 + i*1024}')
            a(f'buffer_load_dwordx4 v{vW1}, {s(SW_,4)}, s{sSO} offen lds'); vm.issue(('st', st))
    dmaw(0)
    srd(a, SKV, P_WS, SZ_KV + SZ_FLG, WS_KV)
    a(f's_cmp_lg_u32 s{sRB}, 0')
    a(f's_cbranch_scc1 G_nozero')
    for i in range(4): a(f'v_mov_b32 v{ZR+i}, 0')
    a(f's_lshl_b32 s{sTMP}, s{sHG}, 13')
    a(f's_lshl_b32 s{sTMP+1}, s{sJ4}, 11')
    a(f's_add_u32 s{sTMP}, s{sTMP}, s{sTMP+1}')
    a(f'buffer_store_dwordx4 {v(ZR,4)}, v{vA1}, {s(SKV,4)}, s{sTMP} offen sc1')
    a(f'buffer_store_dwordx4 {v(ZR,4)}, v{vA1}, {s(SKV,4)}, s{sTMP} offen offset:1024 sc1')
    a(f's_cmp_gt_u32 s{sJ4}, 1')
    a(f's_cbranch_scc1 G_nozero')
    a(f's_lshl_b32 s{sTMP}, s{sHG}, 10')
    a(f's_add_u32 s{sTMP}, s{sTMP}, {SZ_KV}')
    a(f's_cmp_eq_u32 s{sJ4}, 1')
    a(f's_cbranch_scc1 G_zflag')
    a(f's_lshl_b32 s{sTMP}, s{sHG}, 9')
    a(f's_add_u32 s{sTMP}, s{sTMP}, 65536')
    a(f's_mov_b32 exec_hi, 0')
    a(f'G_zflag:')
    a(f'buffer_store_dwordx4 {v(ZR,4)}, v{vA1}, {s(SKV,4)}, s{sTMP} offen sc1')
    a(f's_mov_b64 exec, -1')
    a(f'G_nozero:')
    dmax(1); dmaw(1)
    common_setup(); vm.issue('wphi')
    late_setup()
    for st in range(8):
        vm.wait(('st', st))
        a('s_barrier')
        if st in (0, 4): stamp(a, 1 + st // 4)
        if st + 2 < 8: dmax(st + 2); dmaw(st + 2)
        if st == 1:
            a(f's_cmp_lg_u32 s{sRB}, 0')
            a(f's_cbranch_scc1 G_nopub')
            a(f's_cmp_lg_u32 s{sW}, 4')
            a(f's_cbranch_scc1 G_nopub')
            srd(a, SDB, P_DBG, 256)
            a(f'v_mov_b32 v{t0}, 1')
            a(f's_mov_b64 exec, 1')
            a(f'buffer_atomic_add v{t0}, off, {s(SDB,4)}, 0 sc1')
            a(f's_mov_b64 exec, -1')
            a(f'G_nopub:')
    wo4_setup(a, sJ4, S_CB, sTMP)
    for t in range(8): wo4_one(a, 2, t, SWO, vWO, sTMP)
    GX = R.alloc(36)
    a(f's_lshl_b32 s{sTMP}, s{S_RT}, 15')
    a(f's_lshl_b32 s{sTMP+1}, s{sJ4}, 13')
    a(f's_add_u32 s{sTMP}, s{sTMP}, s{sTMP+1}')
    gate_loads(a, SX, SGW, vA1, GX, 8, sTMP)
    a(f's_lshl_b32 s{S_GN}, s{sJ4}, 5')
    wphi_frags()
    a(f's_lshl_b32 s{sTMP}, s{sJ4}, 12')
    a(f'v_add_u32 v{t1}, s{sTMP}, v{vA1}')
    a('s_waitcnt lgkmcnt(0)')
    wphi_mask()
    a('s_waitcnt vmcnt(0)')
    a.extend(interleave(gate_math(GX, GX + 32, ZR, V_G0), gate_math(GX + 16, GX + 32, WR, V_G1)))
    a('s_barrier')
    for i in range(4): a(f'ds_read_b128 {v(KP+4*i,4)}, v{t1} offset:{HO + i*1024}')
    a('s_waitcnt lgkmcnt(2)')
    a(f's_branch G_epi')
    hi1 = R.hi
    R.release(base)

    a('G_compute:')
    lg = Cnt(a, 'lgkmcnt', 15)
    vXA = R.alloc(8); vWA = R.alloc(4); AC = R.alloc(96); BUF = R.alloc(80)
    common_setup()
    srd(a, SKV, P_WS, SZ_KV + SZ_FLG, WS_KV)
    late_setup()
    a(f's_mov_b32 s{S_GN}, -1')
    a(f'v_and_b32 v{t0}, 31, v{vL}')
    a(f'v_lshrrev_b32 v{t1}, 5, v{vL}')
    a(f'v_bfe_u32 v{t2}, v{vL}, 1, 3')
    a(f'v_xor_b32 v{t2}, v{t2}, v{t1}')
    a(f's_lshl_b32 s{sTMP}, s{sRT}, 12')
    a(f'v_lshlrev_b32 v{t0}, 7, v{t0}')
    a(f'v_add_u32 v{t0}, s{sTMP}, v{t0}')
    a(f'v_lshl_add_u32 v{vXA}, v{t2}, 4, v{t0}')
    for ks in range(1, 4): a(f'v_xor_b32 v{vXA+ks}, {32*ks}, v{vXA}')
    for ks in range(4): a(f'v_add_u32 v{vXA+4+ks}, {2*SLOT}, v{vXA+ks}')
    a(f'v_bfe_u32 v{t0}, v{vL}, 2, 2')
    a(f'v_lshl_add_u32 v{t0}, v{t1}, 3, v{t0}')
    a(f'v_lshlrev_b32 v{vWA}, 7, v{t0}')
    a(f'v_bfe_u32 v{t0}, v{vL}, 4, 1')
    a(f'v_lshl_add_u32 v{vWA}, v{t0}, 5, v{vWA}')
    a(f'v_bfe_u32 v{t0}, v{vL}, 3, 1')
    a(f'v_xor_b32 v{t0}, s{sHP}, v{t0}')
    a(f'v_lshl_add_u32 v{vWA}, v{t0}, 6, v{vWA}')
    a(f'v_and_b32 v{t0}, 3, v{vL}')
    a(f'v_lshl_add_u32 v{vWA}, v{t0}, 3, v{vWA}')
    for i in range(1, 4): a(f'v_add_u32 v{vWA+i}, {i*SLOT}, v{vWA}')
    def reads(n):
        st, ks = divmod(n, 4); sl = st % 4; b = BUF + 20 * (n % 4)
        def rd(txt): return lambda: (a(txt), lg.issue(n))
        o = []
        for seg in (1, 2, 0):
            for r in range(2):
                o.append(rd(f'ds_read_b64_tr_b16 {v(b+8+4*seg+2*r,2)}, v{vWA+sl} offset:{16384 + seg*8192 + (16*ks+4*r)*128}'))
        for t in range(2):
            o.insert(3 * t + 2, rd(f'ds_read_b128 {v(b+4*t,4)}, v{vXA+4*(sl>>1)+ks} offset:{(sl&1)*SLOT + t*4096}'))
        return o
    def mm(n):
        b = BUF + 20 * (n % 4); o = []
        for seg in (1, 2, 0):
            for t in range(2):
                acc = v(AC + 48*t + 16*seg, 16); xf = v(b + 4*t, 4); wf = v(b + 8 + 4*seg, 4)
                A_, B_ = (xf, wf) if seg == 2 else (wf, xf)
                o.append(f'v_mfma_f32_32x32x16_bf16 {acc}, {A_}, {B_}, {"0" if n==0 else acc}')
        return o
    if PREF:
        a(f's_lshl_b32 s{sTMP+2}, s{sJ}, 2')
        a(f's_add_u32 s{sTMP+2}, s{sTMP+2}, s{sW}')
        prefetch(a, sTMP + 2, 2, sE, SX, SW_, vL, t0, t2, vZ, 82, 'G')
    DIST = 2
    a('s_barrier')
    stamp(a, 1)
    for n in range(DIST): weave(a, reads(n), [])
    for n in range(32):
        f = []
        if n + DIST < 32:
            if (n + DIST) % 4 == 0: f.append('s_barrier')
            f += reads(n + DIST)
        if n == 30:
            f.append(lambda: (a('s_waitcnt vmcnt(0)'), zf_issue(a, SDB, vZ), wphi_frags()))
        lg.wait(n)
        weave(a, mm(n), f)
        if n in (7, 15, 23, 31): nstamp(a, 82 + 2 * (n // 8)) if n < 24 else None
    nflush(a, [(82, 20), (84, 21), (86, 22)])
    a(f's_lshl_b32 s{sTMP}, s{sW}, 12')
    a(f'v_add_u32 v{t2}, s{sTMP}, v{vA1}')
    a(f's_lshl_b32 s{sTMP}, s{sRT}, 12')
    a(f's_lshl_b32 s{sTMP+1}, s{sHP}, 11')
    a(f's_add_u32 s{sTMP}, s{sTMP}, s{sTMP+1}')
    a(f'v_add_u32 v{t1}, s{sTMP}, v{vA1}')
    a('s_waitcnt lgkmcnt(0)')
    wphi_mask()
    def pack(dst, src):
        for k in range(8): a(f'v_cvt_pk_bf16_f32 v{dst+k}, v{src+2*k}, v{src+2*k+1}')
    pack(BUF, AC + 48 + 16)
    for i in range(2): a(f'ds_write_b128 v{t2}, {v(BUF+4*i,4)} offset:{HO + i*1024}')
    pack(BUF + 8, AC + 48)
    for i in range(2): a(f'ds_write_b128 v{t2}, {v(BUF+8+4*i,4)} offset:{HO + 2048 + i*1024}')
    pack(KP, AC + 16)
    a('s_waitcnt lgkmcnt(0)')
    a('s_barrier')
    for t in range(2):
        pack(BUF + 16 + 8*t, AC + 48*t + 32)
        for i in range(2): a(f'ds_write_b128 v{t1}, {v(BUF+16+8*t+4*i,4)} offset:{V_LDS + t*4096 + i*1024}')
    pack(QP, AC)
    hi2 = R.hi
    R.release(base)

    a('G_epi:')
    stamp(a, 3)
    D = R.alloc(16); E = R.alloc(16); D2 = R.alloc(16); T = R.alloc(8); P = R.alloc(16)
    vVA = R.alloc(); vM = R.alloc(); vO = R.alloc(); vPA = R.alloc(); KVA = R.alloc(16); BF = R.alloc(32); VF = R.alloc(32)
    feat_mm(a, KP, WP, D)
    wo8_setup(a, sW, sSO)
    def wo1(piece, t): return wo8(piece, t, SWO, vWO, sSO)
    a(f'v_and_b32 v{t0}, 31, v{vL}')
    a(f'v_lshlrev_b32 v{t0}, 6, v{t0}')
    a(f'v_lshrrev_b32 v{t1}, 5, v{vL}')
    a(f'v_lshl_add_u32 v{t0}, v{t1}, 11, v{t0}')
    a(f's_lshl_b32 s{sTMP}, s{sRT}, 13')
    a(f's_lshl_b32 s{sTMP+1}, s{sHP}, 12')
    a(f's_add_u32 s{sTMP}, s{sTMP}, s{sTMP+1}')
    a(f's_add_u32 s{sTMP}, s{sTMP}, {PK_LDS}')
    a(f'v_add_u32 v{vPA}, s{sTMP}, v{t0}')
    a('s_waitcnt lgkmcnt(0)')
    feat_mm(a, QP, WP, D2)
    fk = feat(D, E, T, P, sL)
    weave(a, [x.text for x in fk.ins], [wo1(0, t) for t in range(4)] + [wo1(1, 0)])
    for i in range(4): a(f'ds_write_b128 v{vPA}, {v(P+4*i,4)} offset:{i*16}')
    a('s_waitcnt lgkmcnt(0)')
    stamp(a, 4)
    a('s_barrier')
    a(f's_cmp_ge_u32 s{sW}, 4')
    a(f's_cbranch_scc1 G_noKV')
    a('s_setprio 1')
    a(f's_and_b32 s{sTMP}, s{sW}, 1')
    a(f's_lshl_b32 s{sTMP}, s{sTMP}, 8')
    a(f'v_xor_b32 v{vVA}, s{sTMP}, v{vA1}')
    a(f's_lshl_b32 s{sTMP}, s{sHP}, 11')
    a(f'v_add_u32 v{vVA}, s{sTMP}, v{vVA}')
    a(f'v_bfe_u32 v{t0}, v{vL}, 2, 2')
    a(f'v_lshl_add_u32 v{t0}, v{t1}, 2, v{t0}')
    a(f'v_lshlrev_b32 v{vPA}, 6, v{t0}')
    a(f'v_bfe_u32 v{t0}, v{vL}, 4, 1')
    a(f'v_lshl_add_u32 v{vPA}, v{t0}, 5, v{vPA}')
    a(f'v_and_b32 v{t2}, 3, v{vL}')
    a(f'v_lshl_add_u32 v{vPA}, v{t2}, 3, v{vPA}')
    a(f's_lshl_b32 s{sTMP}, s{sW}, 11')
    a(f's_add_u32 s{sTMP}, s{sTMP}, {PK_LDS}')
    a(f'v_add_u32 v{vPA}, s{sTMP}, v{vPA}')
    lg = Cnt(a, 'lgkmcnt', 15)
    for rt in range(4):
        for mf in range(2):
            a(f'ds_read_b128 {v(VF+8*rt+4*mf,4)}, v{vVA} offset:{V_LDS + rt*4096 + mf*1024}'); lg.issue(rt)
            for rd in range(2):
                a(f'ds_read_b64_tr_b16 {v(BF+8*rt+4*mf+2*rd,2)}, v{vPA} offset:{rt*8192 + (16*mf+8*rd)*64}'); lg.issue(rt)
        if rt == 1: lg.wait(0)
    a(f's_mov_b32 s{sTMP}, 0x3f803f80')
    a(f'v_mul_lo_u32 v{vO}, v{t0}, s{sTMP}')
    a(f'v_add_u32 v{vM}, -1, v{t0}')
    a(f'v_and_b32 v{t0}, 31, v{vL}')
    a(f'v_lshlrev_b32 v{t0}, 2, v{t0}')
    a(f'v_lshl_add_u32 v{t0}, v{t1}, 9, v{t0}')
    a(f'v_bfe_u32 v{t2}, v{vL}, 3, 2')
    a(f'v_lshlrev_b32 v{t2}, 7, v{t2}')
    a(f'v_and_b32 v{vVA}, 7, v{vL}')
    a(f'v_lshl_add_u32 v{t2}, v{vVA}, 2, v{t2}')
    a('s_waitcnt vmcnt(5)')
    zf_check(a, SDB, vZ, sTMP, 'G_cz')
    a(f's_lshl_b32 s{sTMP}, s{sHG}, 2')
    a(f's_add_u32 s{sTMP}, s{sTMP}, s{sW}')
    a(f's_lshl_b32 s{sTMP}, s{sTMP}, 11')
    a(f's_lshl_b32 s{sTMP+1}, s{sHG}, 9')
    a(f's_lshl_b32 s{sTMP+2}, s{sW}, 5')
    a(f's_add_u32 s{sTMP+1}, s{sTMP+1}, s{sTMP+2}')
    a(f's_add_u32 s{sTMP+1}, s{sTMP+1}, 65536')
    for rt in range(4):
        lg.wait(rt)
        for i in range(8): a(f'v_and_or_b32 v{VF+8*rt+i}, v{VF+8*rt+i}, v{vM}, v{vO}')
        for mf in range(2):
            a(f'v_mfma_f32_32x32x16_bf16 {v(KVA,16)}, {v(VF+8*rt+4*mf,4)}, {v(BF+8*rt+4*mf,4)}, {"0" if (rt==0 and mf==0) else v(KVA,16)}')
    for r in range(8 if 'noatom' not in EXP else 0):
        a(f'buffer_atomic_add_f32 v{KVA+r}, v{t0}, {s(SKV,4)}, s{sTMP} offen offset:{((r&3)+8*(r>>2))*128}')
    a(f's_mov_b32 exec_hi, 0')
    a(f'buffer_atomic_add_f32 v{KVA+8}, v{t2}, {s(SKV,4)}, s{sTMP+1} offen')
    a(f's_mov_b64 exec, -1')
    a('s_setprio 0')
    a('G_noKV:')
    stamp(a, 5)
    fq = [x.text for x in feat(D2, E, T, P, sL).ins]
    weave(a, fq[:72], [wo1(1, t) for t in range(1, 4)])
    weave(a, fq[72:], [])
    a(f'v_and_b32 v{t0}, 31, v{vL}')
    a(f'v_lshlrev_b32 v{t0}, 4, v{t0}')
    a(f'v_lshl_add_u32 v{t0}, v{t1}, 11, v{t0}')
    a(f's_lshl_b32 s{sTMP}, s{sRB}, 2')
    a(f's_add_u32 s{sTMP}, s{sTMP}, s{sRT}')
    a(f's_lshl_b32 s{sTMP}, s{sTMP}, 16')
    a(f's_lshl_b32 s{sTMP+1}, s{sHG}, 13')
    a(f's_add_u32 s{sTMP}, s{sTMP}, s{sTMP+1}')
    a(f's_lshl_b32 s{sTMP+1}, s{sHP}, 12')
    a(f's_add_u32 s{sTMP}, s{sTMP}, s{sTMP+1}')
    for i in range(4 if 'nopq' not in EXP else 0):
        a(f'buffer_store_dwordx4 {v(P+4*i,4)}, v{t0}, {s(SPQ,4)}, s{sTMP} offen offset:{i*512} sc1')
    stamp(a, 6)
    a(f's_mov_b32 s{sTMP}, {F_KV}')
    a(f'v_lshlrev_b32 v{t0}, 7, v{vL}')
    a(f'v_mov_b32 v{t1}, 1')
    a(f's_mov_b32 s{S_LATE}, 0')
    a('s_waitcnt vmcnt(0)')
    stamp(a, 7)
    a('s_barrier')
    stamp(a, 8)
    a(f's_cmp_lg_u32 s{sW}, 0')
    a(f's_cbranch_scc1 K_final')
    a(f's_mov_b32 exec_hi, 0')
    a(f'buffer_atomic_add v{t1}, v{t0}, {s(SKV,4)}, s{sTMP} offen sc1')
    a(f's_mov_b64 exec, -1')
    a(f's_branch K_final')
    return max(hi1, hi2, R.hi)
```

```python
import sys
from common import *
from role_g import gen_G
from role_c import gen_C
from role_f import gen_F
KN = NAME + '_kernel'
hdr = open('cdna_kernels/' + NAME + '.s.ref').read().split('; Override launch')[0]
a = Asm()
load_ptrs(a)
a('s_cmp_ge_u32 s2, 256'); a('s_cbranch_scc1 K_end')
if TRACE: a(f'v_mov_b32 v{VTR}, 0')
stamp(a, 0)
a('s_and_b32 s70, s2, 7'); a('s_lshr_b32 s71, s2, 3')
a(f's_lshl_b32 s{S_RT}, s70, 3'); a(f's_lshr_b32 s3, s71, 2'); a(f's_add_u32 s{S_RT}, s{S_RT}, s3'); a(f's_and_b32 s{S_CB}, s71, 3')
if 'tlb' in EXP:
    a('s_waitcnt lgkmcnt(0)')
    a('v_cmp_gt_u32 vcc, 16, v0')
    a('s_and_saveexec_b64 s[72:73], vcc')
    a('s_cbranch_execz K_notlb')
    srd(a, 4, P_WS, 8 << 20); srd(a, 8, P_OUT, 2 << 20); srd(a, 12, P_WO, 0x80000); srd(a, 16, P_DBG, 256); srd(a, 20, P_GW, 0x400)
    a('v_lshlrev_b32 v2, 19, v0')
    a('buffer_load_dword v249, v2, s[4:7], 0 offen offset:3968 sc1')
    a('buffer_load_dword v249, v2, s[8:11], 0 offen sc1')
    a('buffer_load_dword v249, off, s[12:15], 0')
    a('buffer_load_dword v249, off, s[16:19], 0 sc1')
    a('buffer_load_dword v249, off, s[20:23], 0')
    a('K_notlb:')
    a('s_mov_b64 exec, s[72:73]')
a('s_cmp_ge_u32 s71, 16'); a('s_cbranch_scc1 K_conv')
hg = gen_G(a, 70, 71)
a('K_conv:')
a('s_sub_u32 s71, s71, 16')
hc = gen_C(a, 70, 71)
a('K_final:')
hf = gen_F(a)
a('K_end:'); a('s_endpgm')
print('vgprs', hg, hc, hf, file=sys.stderr)
out = hdr + '; @launch grid=(256,1,1) block=(512,1,1) lds=163840\n'
out += f'.amdgcn_target "amdgcn-amd-amdhsa--gfx950"\n.text\n.globl {KN}\n.p2align 8\n.type {KN},@function\n{KN}:\n'
out += a.finish()
out += '.section .rodata,"a"\n' + kdesc(KN, 256 if TRACE else max(hg, hc, hf, 252), 100)
open(sys.argv[1] if len(sys.argv) > 1 else 'cdna_kernels/' + NAME + '.s', 'w').write(out)
```
